```python
import torch

def _softmax(x, axis=-1):
    return torch.softmax(x, dim=axis)
def _gelu(x):
    return torch.nn.functional.gelu(x, approximate="tanh")
def _silu(x):
    return torch.nn.functional.silu(x)
def _sigmoid(x):
    return torch.sigmoid(x)
def _layernorm(x, axis=-1, eps=1e-5):
    m = x.mean(dim=axis, keepdim=True)
    v = x.var(dim=axis, keepdim=True, unbiased=False)
    return (x - m) / torch.sqrt(v + eps)
def _scatter_add(tgt, idx, src, axis=0):
    return tgt.clone().index_add_(axis, idx, src)
def _segment_sum(src, seg, n):
    out = torch.zeros((n,) + src.shape[1:], dtype=src.dtype)
    return out.index_add_(0, seg, src)
def _pad(x, pw):
    flat = tuple(v for pair in reversed(pw) for v in pair)
    return torch.nn.functional.pad(x, flat)

kernel_name = 'concat_heads__ssm_conv_h3__ssm_conv_s5__prompt'

def setup_inputs():

    _w = (lambda a: (lambda t: t.to(torch.bfloat16) if t.is_floating_point() else t)(torch.as_tensor(a)))
    def _A_setup():
        B, S, D = 1, 2048, 640
        ks = 4
        return {
            "q": _w((lambda *s: torch.randn(*s, dtype=torch.bfloat16) * 0.05)(B, S, D)),
            "k": _w((lambda *s: torch.randn(*s, dtype=torch.bfloat16) * 0.2)(B, S, D)),
            "v": _w((lambda *s: torch.randn(*s, dtype=torch.bfloat16) * 0.2)(B, S, D)),
            "shift_k": _w((lambda *s: torch.randn(*s, dtype=torch.bfloat16) * 0.2)(D, ks) * 0.5),
            "ssm_k": _w((lambda *s: torch.randn(*s, dtype=torch.bfloat16) * 0.8)(D, S) * (1.0 / S ** 0.5)),
            "ssm_D": _w((lambda *s: torch.randn(*s, dtype=torch.bfloat16) * 0.2)(D)),
        }
    _A_in = _A_setup()

    def _B_setup():
        B, S, D = 1, 2048, 640
        P = D
        Lambda_re = -0.5 * (lambda _x: torch.exp(torch.as_tensor(_x)))((lambda *s: torch.randn(*s, dtype=torch.bfloat16) * 0.2)(P))
        Lambda_im = (lambda *s: torch.randn(*s, dtype=torch.bfloat16) * 0.4)(P) * 1.0
        B_re = (lambda *s: torch.randn(*s, dtype=torch.bfloat16) * 0.2)(P, D) * (D ** -0.5)
        B_im = (lambda *s: torch.randn(*s, dtype=torch.bfloat16) * 0.2)(P, D) * (D ** -0.5)
        C_re = (lambda *s: torch.randn(*s, dtype=torch.bfloat16) * 0.2)(D, P) * (P ** -0.5)
        C_im = (lambda *s: torch.randn(*s, dtype=torch.bfloat16) * 0.2)(D, P) * (P ** -0.5)
        log_dt = (lambda *s: torch.randn(*s, dtype=torch.bfloat16) * 0.2)(P) * 0.3 - 2.0
        Dskip = (lambda *s: torch.randn(*s, dtype=torch.bfloat16) * 0.05)(D)
        return {
            "x": _w((lambda *s: torch.randn(*s, dtype=torch.bfloat16) * 0.05)(B, S, D)),
            "Lambda_re": _w(Lambda_re),
            "Lambda_im": _w(Lambda_im),
            "B_re": _w(B_re),
            "B_im": _w(B_im),
            "C_re": _w(C_re),
            "C_im": _w(C_im),
            "log_dt": _w(log_dt),
            "Dskip": _w(Dskip),
        }
    _B_in = _B_setup()

    return {
        "A_q": _A_in["q"],
        "A_k": _A_in["k"],
        "A_v": _A_in["v"],
        "A_shift_k": _A_in["shift_k"],
        "A_ssm_k": _A_in["ssm_k"],
        "A_ssm_D": _A_in["ssm_D"],
        "B_x": _B_in["x"],
        "B_Lambda_re": _B_in["Lambda_re"],
        "B_Lambda_im": _B_in["Lambda_im"],
        "B_B_re": _B_in["B_re"],
        "B_B_im": _B_in["B_im"],
        "B_C_re": _B_in["C_re"],
        "B_C_im": _B_in["C_im"],
        "B_log_dt": _B_in["log_dt"],
        "B_Dskip": _B_in["Dskip"],
    }

def reference(A_q, A_k, A_v, A_shift_k, A_ssm_k, A_ssm_D, B_x, B_Lambda_re, B_Lambda_im, B_B_re, B_B_im, B_C_re, B_C_im, B_log_dt, B_Dskip):
    def _A_ref(q, k, v, shift_k, ssm_k, ssm_D):
        B, S, D = q.shape
        ks = shift_k.shape[-1]
        k_pad = _pad(k, ((0, 0), (ks - 1, 0), (0, 0)))
        k_shift = torch.zeros_like(k)
        for t in range(ks):
            k_shift = k_shift + k_pad[:, t:t + S, :] * shift_k[:, ks - 1 - t][None, None, :]
        kv = k_shift * v
        L = 2 * S
        kv_pad = _pad(kv, ((0, 0), (0, S), (0, 0)))
        kf_pad = _pad(ssm_k, ((0, 0), (0, S)))
        kv_f = (lambda x, axes=(-2,-1): torch.fft.rfft2(x.float(), dim=axes))(kv_pad[:, None, :, :], axes=(1, 2))
        kf_f = (lambda x, axes=(-2,-1): torch.fft.rfft2(x.float(), dim=axes))(kf_pad[:, None, :], axes=(1, 2))
        kf_f = (lambda x, *d: x.permute(*d))(kf_f, 1, 2, 0)
        y_f = kv_f * kf_f[None, :, :, :]
        y = (lambda x, s, axes=(-2,-1): torch.fft.irfft2(x, s=s, dim=axes).to(torch.bfloat16))(y_f, (1, L), axes=(1, 2))[:, 0, :S, :]
        y = y + kv * ssm_D[None, None, :]
        return q * y

    def _B_ref(x, Lambda_re, Lambda_im, B_re, B_im, C_re, C_im, log_dt, Dskip):
        Bsz, L, H = x.shape
        Lam = Lambda_re + 1j * Lambda_im
        Bmat = B_re + 1j * B_im
        Cmat = C_re + 1j * C_im
        dt = torch.exp(log_dt)
        Lam_bar = torch.exp(dt * Lam)
        B_bar = ((Lam_bar - 1.0) / Lam)[:, None] * Bmat
        Bu = torch.einsum("bld,pd->blp", x + 0j, B_bar)
        h = torch.zeros_like(Bu[:, 0, :])
        hs = []
        for t in range(L):
            h = Lam_bar[None, :] * h + Bu[:, t, :]
            hs.append(h)
        hseq = torch.stack(hs, 1)
        y = 2.0 * torch.einsum("blp,dp->bld", hseq, Cmat).real + x * Dskip[None, None, :]
        return y

    a = _A_ref(A_q, A_k, A_v, A_shift_k, A_ssm_k, A_ssm_D)
    b = _B_ref(B_x, B_Lambda_re, B_Lambda_im, B_B_re, B_B_im, B_C_re, B_C_im, B_log_dt, B_Dskip)
    return torch.concatenate([a, b], axis=-1)
```

```python
import re

TRANS = ("v_exp_f32","v_log_f32","v_rcp_f32","v_rsq_f32","v_sqrt_f32","v_sin_f32","v_cos_f32","v_rcp_iflag_f32")

def regs_of(tok):
    tok = tok.strip()
    tok = tok.lstrip('-')
    if tok.startswith('abs(') or tok.startswith('|'):
        tok = tok.replace('abs(','').replace(')','').replace('|','')
    m = re.fullmatch(r'([vas])\[(\d+):(\d+)\]', tok)
    if m:
        return {(m.group(1), i) for i in range(int(m.group(2)), int(m.group(3))+1)}
    m = re.fullmatch(r'([vas])(\d+)', tok)
    if m:
        return {(m.group(1), int(m.group(2)))}
    if tok in ('vcc','vcc_lo','vcc_hi'): return {('x','vcc')}
    if tok in ('exec','exec_lo','exec_hi'): return {('x','exec')}
    if tok == 'm0': return {('x','m0')}
    return set()

class Ins:
    def __init__(self, text):
        self.text = text
        t = text.split(';')[0].strip()
        self.label = t.endswith(':')
        self.dir = t.startswith('.') and not self.label
        self.op = t.split()[0] if t else ''
        rest = t[len(self.op):].strip()
        ops = []; cur = ''; depth = 0
        for ch in rest:
            if ch in '[(': depth += 1
            if ch in '])': depth -= 1
            if ch == ',' and depth == 0:
                ops.append(cur.strip()); cur = ''
            else:
                cur += ch
        if cur.strip(): ops.append(cur.strip())
        self.mods = ''
        if ops:
            parts = ops[-1].split()
            ops[-1] = parts[0] if parts else ''
            self.mods = ' '.join(parts[1:])
        self.ops = ops
        self.classify()

    def classify(self):
        op = self.op; ops = self.ops
        self.kind = 'other'; self.w = set(); self.r = set()
        self.srcC = set(); self.srcAB = set(); self.passes = 0; self.sdata = set()
        R = [regs_of(o) for o in ops]
        if self.label or self.dir or not op:
            self.kind = 'none'; return
        if op.startswith('v_mfma'):
            self.kind = 'mfma'; self.w = R[0]; self.srcAB = R[1] | R[2]; self.srcC = R[3]; self.r = self.srcAB | self.srcC
            self.passes = 8 if '32x32x16' in op else 4
        elif op.startswith('v_'):
            self.kind = 'valu'
            self.w = set(R[0])
            srcs = R[1:]
            if op.startswith(('v_add_co','v_sub_co','v_subrev_co','v_addc_co','v_subb_co','v_div_scale','v_mad_u64')):
                self.w |= R[1]; srcs = R[2:]
            for s in srcs: self.r |= s
            if op.startswith(('v_fmac','v_pk_fmac','v_dot2c')) : self.r |= R[0]
            if op.startswith('v_permlane') : self.r |= R[0]; self.w |= R[1]
            if op.startswith('v_cmpx'): self.w |= {('x','exec')}
            if op.startswith('v_writelane'): self.r |= R[0]
        elif op.startswith('ds_'):
            self.kind = 'ds'
            if op.startswith(('ds_read','ds_bpermute','ds_permute','ds_swizzle')):
                self.w = R[0]
                for s in R[1:]: self.r |= s
            else:
                for s in R: self.r |= s
        elif op.startswith(('buffer_','global_')):
            self.kind = 'vmem'
            islds = bool(re.search(r'\blds\b', self.mods))
            self.ldsdma = islds
            if op in ('buffer_wbl2','buffer_inv'):
                pass
            elif 'load' in op and not islds:
                self.w = R[0]
                for s in R[1:]: self.r |= s
            else:
                for s in R: self.r |= s
                if islds: self.r |= {('x','m0')}
                if 'store' in op and ('x4' in op or 'x3' in op):
                    self.sdata = R[0] if op.startswith('buffer_') else R[1]
        elif op.startswith('s_'):
            self.kind = 'salu'
            if op.startswith(('s_cmp','s_cbranch','s_branch','s_waitcnt','s_barrier','s_nop','s_endpgm','s_sleep','s_setprio','s_bitcmp')):
                for s in R: self.r |= s
            else:
                if R: self.w = set(R[0])
                for s in R[1:]: self.r |= s
                if 'saveexec' in op: self.w |= {('x','exec')}

    def states(self):
        if self.kind == 'none': return 0
        if self.op == 's_nop': return int(self.ops[0], 0) + 1
        return 1

def isv(s): return {x for x in s if x[0] in 'va'}
def iss(s): return {x for x in s if x[0] == 's' or x == ('x','vcc')}

def need(p, c):
    n = 0
    if p.kind == 'valu':
        wv = isv(p.w); ws = iss(p.w)
        if c.kind == 'mfma' and wv & c.r: n = max(n, 2)
        if c.kind == 'vmem' and ws & c.r: n = max(n, 5)
        if c.kind == 'valu':
            if ws & c.r: n = max(n, 4 if c.op.startswith(('v_readlane','v_writelane')) else 2)
            if c.op.startswith(('v_cndmask','v_addc','v_subb')) and ('x','vcc') in p.w: n = max(n, 2)
            if c.op.startswith('v_div_fmas') and ('x','vcc') in p.w: n = max(n, 4)
            if wv & c.r:
                if c.op.startswith(('v_readfirstlane','v_readlane')): n = max(n, 1)
                if c.op.startswith('v_permlane') or 'dpp' in c.op or 'row_' in c.mods: n = max(n, 2)
                if p.op.replace('_e32','').replace('_e64','') in TRANS: n = max(n, 1)
                if 'sdwa' in p.op or 'op_sel' in p.mods and not p.op.startswith('v_pk_'): n = max(n, 1)
        if c.kind == 'salu' and ws & c.r: n = max(n, 1)
        if ('x','exec') in p.w: n = max(n, 5)
    if p.kind == 'mfma':
        big = 12 if p.passes == 8 else 8
        if c.kind == 'mfma':
            if p.w & c.srcAB: n = max(n, big)
            if p.w & c.srcC and not (p.w == c.srcC and p.passes == c.passes): n = max(n, 10 if p.passes == 8 else 6)
            if p.w & c.w and not (p.w == c.srcC and p.passes == c.passes): n = max(n, big)
        elif c.kind in ('valu','vmem','ds'):
            if p.w & (c.r | c.w): n = max(n, big)
            if c.kind == 'valu' and p.srcC & c.w: n = max(n, 7 if p.passes == 8 else 3)
    if p.kind == 'salu' and ('x','m0') in p.w and c.kind == 'vmem' and getattr(c,'ldsdma',False): n = max(n, 1)
    if p.kind == 'vmem' and p.sdata and p.sdata & c.w:
        n = max(n, 2 if c.kind in ('valu','mfma') else 1)
    return n

def fix_hazards(lines):
    out = []
    hist = []
    added = 0
    for ln in lines:
        ins = Ins(ln)
        if ins.kind != 'none':
            dist = 0; req = 0
            for p in reversed(hist):
                r = need(p, ins) - dist
                if r > req: req = r
                dist += p.states()
                if dist > 20: break
            while req > 0:
                k = min(req, 16)
                nop = Ins('s_nop %d' % (k-1)); out.append('    s_nop %d ; hz' % (k-1)); hist.append(nop); req -= k; added += 1
            hist.append(ins)
            if len(hist) > 40: hist = hist[-40:]
        out.append(ln)
    return out, added

class G:
    def __init__(self):
        self.lines = []
        self.vm = []
        self.nlab = 0
    def e(self, s, tag=None):
        for ln in s.strip().split('\n'):
            ln = ln.strip()
            if not ln: continue
            self.lines.append(('' if ln.endswith(':') else '    ') + ln)
            op = ln.split()[0]
            if op.startswith(('buffer_','global_')) and op not in ('buffer_wbl2','buffer_inv'):
                self.vm.append(tag)
    def c(self, s): self.lines.append('    ; ' + s)
    def label(self, name): self.lines.append(name + ':')
    def newlabel(self, p='L'):
        self.nlab += 1; return '%s_%d' % (p, self.nlab)
    def vmN(self, tag):
        idx = [i for i, t in enumerate(self.vm) if t == tag]
        if not idx: return None
        return len(self.vm) - 1 - idx[-1]
    def wait_vm(self, tag, extra=''):
        n = self.vmN(tag)
        if n is None:
            if extra: self.e('s_waitcnt ' + extra)
            return
        assert n <= 63, n
        self.e('s_waitcnt vmcnt(%d) %s' % (n, extra))
        self.vm = self.vm[len(self.vm)-n:] if n else []
    def wait_vm0(self, extra=''):
        self.e('s_waitcnt vmcnt(0) %s' % extra); self.vm = []
```

```python
from asmlib import G

def role_A(g, M):
    P, sp, srd, vr, ar, mk_srd, stamp, diag_out, get_tag = M.P, M.sp, M.srd, M.vr, M.ar, M.mk_srd, M.stamp, M.diag_out, M.get_tag
    sW, sXCD, sIDX = M.sW, M.sXCD, M.sIDX
    SRD_WS, SRD_OUT, SRD_DBG = M.SRD_WS, M.SRD_OUT, M.SRD_DBG
    OPT, DIAG = M.OPT, M.DIAG
    SRD_K, SRD_V, SRD_SK, SRD_Q = 52, 56, 60, 64
    sA, sTT, sCG, sCH = 6, 7, 8, 9
    sKC, sU, sD0, sD1, sRND = 10, 11, 80, 81, 82
    KCS = 16640; CPS = 4160
    UBASE = 8 * KCS; USZ = 4608
    TBASE = 4 * KCS
    TAG, ZERO = 10, 11
    g.c('==== role A ====')
    g.e(f'''
    s_mul_i32 s{sA}, s{sXCD}, 10
    s_add_u32 s{sA}, s{sA}, s{sIDX}
    s_sub_u32 s{sA}, s{sA}, 20
    s_and_b32 s{sTT}, s{sA}, 7
    s_lshr_b32 s{sCG}, s{sA}, 3
    s_lshl_b32 s{sCH}, s{sA}, 3
    s_add_u32 s{sCH}, s{sCH}, s{sW}
    s_mul_i32 s{sKC}, s{sW}, {KCS}
    s_mul_i32 s{sU}, s{sW}, {USZ}
    s_add_u32 s{sU}, s{sU}, {UBASE}
    ''')
    g.e(f'''
    v_and_b32 v1, 7, v0
    v_lshrrev_b32 v2, 3, v0
    s_lshl_b32 s13, s{sW}, 3
    v_add_u32 v2, s13, v2
    s_lshl_b32 s13, s{sTT}, 5
    v_add_u32 v3, s13, v2
    v_mul_u32_u24 v3, {8*1280}, v3
    v_lshl_add_u32 v3, v1, 4, v3
    s_lshl_b32 s13, s{sCG}, 7
    v_add_u32 v3, s13, v3
    v_subrev_u32 v4, 3840, v3
    s_lshl_b32 s13, s{sCG}, 9
    v_lshl_add_u32 v5, v1, 6, s13
    v_mov_b32 v{ZERO}, 0
    s_movk_i32 s12, 5120
    s_waitcnt lgkmcnt(0)
    ''')
    stamp(g, 0)
    mk_srd(g, SRD_K, 'k', 2621440)
    mk_srd(g, SRD_V, 'v', 2621440)
    KR, VR, WR = 16, 60, 92
    for i in range(4): g.e(f'global_load_dwordx4 {vr(WR+4*i,4)}, v5, {sp("shk")} offset:{16*i}', tag='w')
    for r in range(3): g.e(f'buffer_load_dwordx4 {vr(KR+4*r,4)}, v4, {srd(SRD_K)}, 0 offen offset:{1280*r}', tag='kv')
    for r in range(8):
        so = '0' if r < 4 else 's12'
        g.e(f'buffer_load_dwordx4 {vr(KR+12+4*r,4)}, v3, {srd(SRD_K)}, {so} offen offset:{1280*(r&3)}', tag='kv')
        g.e(f'buffer_load_dwordx4 {vr(VR+4*r,4)}, v3, {srd(SRD_V)}, {so} offen offset:{1280*(r&3)}', tag='kv')
    mk_srd(g, SRD_SK, 'ssmk', 2621440)
    mk_srd(g, SRD_Q, 'q', 2621440)
    mk_srd(g, SRD_WS, 'ws', 0x10000000)
    mk_srd(g, SRD_OUT, 'out', 10485760)
    mk_srd(g, SRD_DBG, 'dbg', 256)
    g.e(f'v_lshlrev_b32 v6, 4, v0\ns_lshl_b32 s13, s{sCH}, 12\ns_add_u32 s14, s13, 16384')
    for rnd in range(2):
        b = 36 * rnd
        for i in range(4):
            g.e(f'buffer_load_dwordx4 {ar(b+4*i,4)}, v6, {srd(SRD_SK)}, s{13+rnd} offen offset:{1024*i}', tag=f'K{rnd}')
            g.e(f'buffer_load_dwordx4 {ar(b+16+4*i,4)}, v6, {srd(SRD_SK)}, s{13+rnd} offen offset:{1024*i+4}', tag=f'K{rnd}')
            g.e(f'buffer_load_dword a{b+32+i}, v6, {srd(SRD_SK)}, s{13+rnd} offen offset:{1024*i+20}', tag=f'K{rnd}')
    g.e(f'buffer_load_dword v{TAG}, v{ZERO}, {srd(SRD_DBG)}, 0 offen sc1', tag='tag')
    g.e(f'''
    s_lshl_b32 s13, s{sCH}, 1
    s_and_b32 s13, s13, 0xfffffffc
    s_add_u32 s14, s{P['ssmD']}, s13
    s_addc_u32 s15, s{P['ssmD']+1}, 0
    s_load_dword s{sD0}, s[14:15], 0
    s_load_dword s{sD1}, s[14:15], 8
    ''')
    g.e(f'''
    v_mov_b32 v12, 0
    v_mov_b32 v13, 0
    v_mov_b32 v14, 0
    v_mov_b32 v15, 0
    v_add_u32 v7, s{sU}, v6
    s_mov_b64 exec, 0xffffffff
    ds_write_b128 v7, v[12:15] offset:4096
    s_mov_b64 exec, -1
    s_waitcnt lgkmcnt(0)
    s_bitcmp1_b32 s{sCH}, 0
    s_cselect_b32 s13, 0, 16
    s_lshl_b32 s{sD0}, s{sD0}, s13
    s_lshl_b32 s{sD1}, s{sD1}, s13
    s_and_b32 s{sD0}, s{sD0}, 0xffff0000
    s_and_b32 s{sD1}, s{sD1}, 0xffff0000
    ''')
    WF = 108
    g.wait_vm('w')
    for ch in range(8):
        for tap in range(4):
            src = WR + 2*ch + (tap >> 1)
            if tap & 1: g.e(f'v_and_b32 v{WF+tap*8+ch}, 0xffff0000, v{src}')
            else: g.e(f'v_lshlrev_b32 v{WF+tap*8+ch}, 16, v{src}')
    g.e(f'''
    v_sub_u32 v8, 31, v2
    v_xor_b32 v8, v8, v1
    v_lshlrev_b32 v8, 4, v8
    v_lshl_add_u32 v8, v1, 12, v8
    v_add_u32 v8, {TBASE}, v8
    ''')
    g.wait_vm('kv')
    stamp(g, 1)
    KF, VF, SF, OP = 140, 162, 178, 194
    for cp in range(4):
        for r in range(11):
            g.e(f'v_lshlrev_b32 v{KF+2*r}, 16, v{KR+4*r+cp}\nv_and_b32 v{KF+2*r+1}, 0xffff0000, v{KR+4*r+cp}')
        for r in range(8):
            g.e(f'v_lshlrev_b32 v{VF+2*r}, 16, v{VR+4*r+cp}\nv_and_b32 v{VF+2*r+1}, 0xffff0000, v{VR+4*r+cp}')
        for tap in (3, 2, 1, 0):
            for r in range(8):
                kk = vr(KF + 2*(r + 3 - tap), 2); w = vr(WF + tap*8 + 2*cp, 2); s = vr(SF + 2*r, 2)
                if tap == 3: g.e(f'v_pk_mul_f32 {s}, {kk}, {w}')
                else: g.e(f'v_pk_fma_f32 {s}, {kk}, {w}, {s}')
        for r in range(8):
            g.e(f'v_pk_mul_f32 {vr(SF+2*r,2)}, {vr(SF+2*r,2)}, {vr(VF+2*r,2)}')
        o = OP + 8*(cp & 1)
        for hh in range(2):
            for d in range(4):
                g.e(f'v_cvt_pk_bf16_f32 v{o+4*hh+d}, v{SF+2*(7-2*d)+hh}, v{SF+2*(6-2*d)+hh}')
            g.e(f'ds_write_b128 v8, {vr(o+4*hh,4)} offset:{(2*cp+hh)*512}')
    g.e(f'''
    v_lshrrev_b32 v1, 5, v0
    v_and_b32 v2, 31, v0
    s_lshl_b32 s13, s{sW}, 1
    v_xor_b32 v3, s13, v2
    v_xor_b32 v4, 1, v3
    v_lshlrev_b32 v3, 4, v3
    v_lshlrev_b32 v4, 4, v4
    v_lshl_add_u32 v3, v1, 9, v3
    v_lshl_add_u32 v4, v1, 9, v4
    s_lshl_b32 s13, s{sW}, 13
    s_add_u32 s13, s13, {TBASE}
    v_add_u32 v3, s13, v3
    v_add_u32 v4, s13, v4
    v_lshlrev_b32 v5, 12, v1
    v_lshl_add_u32 v5, v2, 4, v5
    s_lshl_b32 s13, s{sCG}, 6
    s_lshl_b32 s14, s{sW}, 4
    s_add_u32 s13, s13, s14
    s_lshl_b32 s13, s13, 12
    s_sub_u32 s14, 7, s{sTT}
    s_lshl_b32 s14, s14, 9
    s_add_u32 s13, s13, s14
    s_waitcnt lgkmcnt(0)
    s_barrier
    ''')
    RB = 16
    for i in range(8): g.e(f'ds_read_b128 {vr(RB+4*i,4)}, v{3 + (i >> 2)} offset:{1024*i}')
    for i in range(8):
        g.e(f's_waitcnt lgkmcnt({7-i})')
        g.e(f'buffer_store_dwordx4 {vr(RB+4*i,4)}, v5, {srd(SRD_WS)}, s13 offen sc1', tag='us')
        if i < 7: g.e('s_add_u32 s13, s13, 8192')
    stamp(g, 2)
    def build(rnd):
        b = 36 * rnd
        T = 48
        g.e(f's_add_u32 s14, s{sKC}, {4*KCS*rnd}\nv_add_u32 v7, s14, v6')
        for i in range(4):
            o = 32 + 1024*i
            g.e(f'ds_write_b128 v7, {ar(b+4*i,4)} offset:{o}')
            g.e(f'ds_write_b128 v7, {ar(b+16+4*i,4)} offset:{2*CPS+o}')
            t = T + 20*(i & 1)
            g.e(f'v_accvgpr_read_b32 v{t}, a{b+4*i}')
            for j in range(4): g.e(f'v_accvgpr_read_b32 v{t+1+j}, a{b+16+4*i+j}')
            g.e(f'v_accvgpr_read_b32 v{t+5}, a{b+32+i}')
            for j in range(4): g.e(f'v_alignbit_b32 v{t+8+j}, v{t+1+j}, v{t+j}, 16')
            for j in range(4): g.e(f'v_alignbit_b32 v{t+12+j}, v{t+2+j}, v{t+1+j}, 16')
            g.e(f'ds_write_b128 v7, {vr(t+8,4)} offset:{CPS+o}')
            g.e(f'ds_write_b128 v7, {vr(t+12,4)} offset:{3*CPS+o}')
            if i == 0:
                g.e(f'''
                s_mov_b64 exec, 1
                v_lshlrev_b32 v{t+16}, 16, v{t}
                ds_write_b128 v7, v[12:15]
                ds_write_b128 v7, v[12:15] offset:16
                ds_write_b128 v7, v[12:15] offset:{CPS}
                ds_write_b128 v7, v[12:15] offset:{CPS+16}
                ds_write_b128 v7, v[12:15] offset:{2*CPS}
                ds_write_b128 v7, v[12:15] offset:{2*CPS+16}
                ds_write_b128 v7, v[12:15] offset:{3*CPS}
                ds_write_b128 v7, v[12:15] offset:{3*CPS+16}
                ds_write_b32 v7, v{t+16} offset:{CPS+28}
                ds_write_b32 v7, v{t} offset:{2*CPS+28}
                ds_write_b32 v7, v{t+16} offset:{3*CPS+24}
                ds_write_b32 v7, v{t+8} offset:{3*CPS+28}
                s_mov_b64 exec, -1
                ''')
    g.wait_vm('tag')
    build(0)
    keep = list(g.vm)
    get_tag(g, TAG, ZERO)
    g.vm = keep
    g.e(f'''
    s_lshl_b32 s13, s{sA}, 2
    s_add_u32 s13, s13, s{sW}
    s_lshl_b32 s13, s13, 7
    s_add_u32 s13, s13, {M.FU_OFF:#x}
    ''')
    g.wait_vm0()
    g.e(f's_mov_b64 exec, 1\nbuffer_store_dword v{TAG}, v{ZERO}, {srd(SRD_WS)}, s13 offen sc1\ns_mov_b64 exec, -1')
    stamp(g, 3)
    g.e('s_barrier')
    build(1)
    g.e(f'''
    v_and_b32 v1, 7, v0
    v_lshlrev_b32 v1, 9, v1
    s_lshl_b32 s13, s{sCG}, 5
    s_lshr_b32 s14, s{sTT}, 1
    s_add_u32 s13, s13, s14
    s_lshl_b32 s13, s13, 7
    s_add_u32 s13, s13, {M.FU_OFF:#x}
    s_mov_b32 s15, {M.SPIN_MAX}
    ''')
    Lp, Ld = g.newlabel('Lupoll'), g.newlabel('Ludone')
    g.label(Lp)
    g.e(f'buffer_load_dword v2, v1, {srd(SRD_WS)}, s13 offen sc1')
    g.wait_vm0()
    g.e(f'v_cmp_ne_u32 vcc, v2, v{TAG}\ns_cbranch_vccz {Ld}\ns_sub_u32 s15, s15, 1\ns_cmp_lg_u32 s15, 0\ns_cbranch_scc1 {Lp}')
    g.label(Ld)
    stamp(g, 4)
    g.e(f's_lshl_b32 s13, s{sCH}, 12\ns_add_u32 s14, s13, 16384\ns_mov_b32 m0, s{sU}')
    for i in range(4): g.e(f'buffer_load_dwordx4 v6, {srd(SRD_WS)}, s13 offen offset:{1024*i} sc1 lds', tag='u0')
    g.e('s_waitcnt lgkmcnt(0)')
    for i in range(4): g.e(f'buffer_load_dwordx4 {ar(4*i,4)}, v6, {srd(SRD_WS)}, s14 offen offset:{1024*i} sc1', tag='u1')
    g.e(f'''
    v_lshrrev_b32 v1, 1, v0
    s_lshl_b32 s13, s{sW}, 5
    v_add_u32 v1, s13, v1
    v_and_b32 v2, 1, v0
    v_mul_u32_u24 v8, 5120, v1
    v_lshl_add_u32 v8, v2, 3, v8
    s_lshl_b32 s13, s{sA}, 4
    v_add_u32 v8, s13, v8
    v_lshlrev_b32 v9, 3, v1
    v_mul_u32_u24 v2, {4*KCS+128}, v2
    v_add_u32 v9, v9, v2
    ''')
    qloads = []
    for Gi in range(4):
        for r in range(4):
            qloads.append([f's_mov_b32 s12, {Gi*512*1280}', f'buffer_load_dwordx2 {ar(16+8*Gi+2*r,2)}, v8, {srd(SRD_Q)}, s12 offen offset:{1280*r}'])
    VT, VP, VK, VZ = 1, 2, 3, 4
    g.e(f'''
    v_and_b32 v12, 15, v0
    v_lshrrev_b32 v13, 4, v0
    v_add_u32 v14, 1, v12
    v_and_b32 v15, 3, v14
    v_mul_u32_u24 v15, {CPS}, v15
    v_and_b32 v14, 28, v14
    v_lshl_add_u32 v15, v14, 1, v15
    v_lshl_add_u32 v15, v13, 4, v15
    v_add_u32 v{VT}, s{sKC}, v15
    v_lshlrev_b32 v14, 5, v12
    v_sub_u32 v14, 480, v14
    v_lshl_add_u32 v15, v13, 4, v14
    v_add_u32 v{VP}, s{sU}, v15
    v_lshlrev_b32 v15, 3, v13
    v_sub_u32 v15, v14, v15
    v_add_u32 v15, 24, v15
    v_add_u32 v{VK}, s{sU}, v15
    v_lshlrev_b32 v14, 5, v12
    v_lshl_add_u32 v14, v13, 3, v14
    v_add_u32 v{VZ}, s{sKC}, v14
    s_mov_b32 s{sRND}, 0
    ''')
    ACC = 16
    FR = [48, 112]
    def reads(rho, fb):
        out = []
        for i in range(8):
            c = 8*i + rho
            out.append(f'ds_read_b64 {vr(fb+4*i,2)}, v{VT} offset:{64*c}')
            out.append(f'ds_read_b64 {vr(fb+4*i+2,2)}, v{VT} offset:{64*c+8}')
            e = 8*i - rho
            out.append(f'ds_read_b128 {vr(fb+32+4*i,4)}, v{VP} offset:{64*(56-e)}')
        return out
    def mfmas(fb, first):
        out = []; seen = set()
        for i in range(8):
            for j in range(8 - i):
                T = i + j
                c = '0' if (first and T not in seen) else vr(ACC+4*T, 4)
                seen.add(T)
                out.append(f'v_mfma_f32_16x16x32_bf16 {vr(ACC+4*T,4)}, {vr(fb+4*i,4)}, {vr(fb+32+4*j,4)}, {c}')
        return out
    g.wait_vm('u0')
    stamp(g, 5)
    Lr = g.newlabel('Lround')
    g.label(Lr)
    for r in reads(0, FR[0]): g.e(r)
    for rho in range(8):
        g.e('s_waitcnt lgkmcnt(0)')
        mf = mfmas(FR[rho & 1], rho == 0)
        rd = reads(rho + 1, FR[(rho+1) & 1]) if rho < 7 else [f'ds_read_b64 {vr(FR[0]+2*T,2)}, v{VK} offset:{512*(7-T)}' for T in range(8)]
        for n, m in enumerate(mf):
            g.e(m)
            if n < len(rd): g.e(rd[n])
            if n in (28, 32) and rho < 8:
                pass
    g.e('s_waitcnt lgkmcnt(0)')
    for T in range(8):
        k0, k1 = FR[0] + 2*T, FR[0] + 2*T + 1
        t = FR[1] + 8*(T & 1)
        g.e(f'''
        v_and_b32 v{t}, 0xffff0000, v{k1}
        v_lshlrev_b32 v{t+1}, 16, v{k1}
        v_and_b32 v{t+2}, 0xffff0000, v{k0}
        v_lshlrev_b32 v{t+3}, 16, v{k0}
        v_fmac_f32 v{ACC+4*T}, s{sD0}, v{t}
        v_fmac_f32 v{ACC+4*T+1}, s{sD0}, v{t+1}
        v_fmac_f32 v{ACC+4*T+2}, s{sD0}, v{t+2}
        v_fmac_f32 v{ACC+4*T+3}, s{sD0}, v{t+3}
        v_cvt_pk_bf16_f32 v{t+4}, v{ACC+4*T}, v{ACC+4*T+1}
        v_cvt_pk_bf16_f32 v{t+5}, v{ACC+4*T+2}, v{ACC+4*T+3}
        ds_write_b64 v{VZ}, {vr(t+4,2)} offset:{512*T}
        ''')
    Le = g.newlabel('Lconvd')
    g.e(f's_cmp_lg_u32 s{sRND}, 0\ns_cbranch_scc1 {Le}')
    g.wait_vm('u1')
    g.e(f'v_add_u32 v7, s{sU}, v6')
    for i in range(4): g.e(f'ds_write_b128 v7, {ar(4*i,4)} offset:{1024*i}')
    for q in qloads:
        for ins in q: g.e(ins, tag='q')
    g.e(f'''
    v_add_u32 v{VT}, {4*KCS}, v{VT}
    v_add_u32 v{VZ}, {4*KCS+128}, v{VZ}
    s_mov_b32 s{sD0}, s{sD1}
    s_mov_b32 s{sRND}, 1
    s_waitcnt lgkmcnt(0)
    s_branch {Lr}
    ''')
    g.label(Le)
    stamp(g, 6)
    g.wait_vm0('lgkmcnt(0)')
    g.e('s_barrier')
    Z = 16
    for Gi in range(4):
        for e in range(4):
            g.e(f'ds_read_b64 {vr(Z+8*Gi+2*e,2)}, v9 offset:{e*KCS + 1024*Gi}')
    g.e(f'''
    v_lshrrev_b32 v1, 1, v0
    s_lshl_b32 s13, s{sW}, 5
    v_add_u32 v1, s13, v1
    v_mul_u32_u24 v1, 20480, v1
    v_and_b32 v2, 1, v0
    v_lshl_add_u32 v1, v2, 4, v1
    s_lshl_b32 s13, s{sA}, 5
    ''')
    osc = ' sc1' if OPT.get('asc1') else ''
    for Gi in range(4):
        g.e(f's_waitcnt lgkmcnt({12-4*Gi})')
        for r in range(4):
            n = Gi*4 + r
            t = 64 + 12*(n & 3)
            g.e(f'v_accvgpr_read_b32 v{t+8}, a{16+8*Gi+2*r}\nv_accvgpr_read_b32 v{t+9}, a{16+8*Gi+2*r+1}')
            for e in range(4):
                zsrc = Z + 8*Gi + 2*e + (r >> 1)
                g.e(f'v_and_b32 v{t+e}, 0xffff0000, v{zsrc}' if r & 1 else f'v_lshlrev_b32 v{t+e}, 16, v{zsrc}')
                qsrc = t + 8 + (e >> 1)
                g.e(f'v_and_b32 v{t+4+e}, 0xffff0000, v{qsrc}' if e & 1 else f'v_lshlrev_b32 v{t+4+e}, 16, v{qsrc}')
            g.e(f'v_pk_mul_f32 {vr(t,2)}, {vr(t,2)}, {vr(t+4,2)}\nv_pk_mul_f32 {vr(t+2,2)}, {vr(t+2,2)}, {vr(t+6,2)}')
            g.e(f'buffer_store_dwordx4 {vr(t,4)}, v1, {srd(SRD_OUT)}, s13 offen{osc}')
            if n < 15: g.e(f's_add_u32 s13, s13, {5120 if r < 3 else (512-3)*5120}')
    if DIAG:
        g.wait_vm0(); stamp(g, 7); diag_out(g, 8)
    M.end_spin(g, TAG)
    g.e('s_endpgm')
```

```python
import sys
from asmlib import G, fix_hazards

NAME = "concat_heads__ssm_conv_h3__ssm_conv_s5__prompt"
DIAG = '--diag' in sys.argv
OPT = {a.split('=')[0][2:]: (a.split('=')[1] if '=' in a else '1') for a in sys.argv[1:] if a.startswith('--')}

UR_OFF = 0
H_OFF = 0x400000
E_OFF = 0xA00000
FH_OFF = 0xB00000
FU_OFF = 0xC00000
DIAG_OFF = 0xD00000
SPIN_MAX = 20000

P = dict(q=16, k=18, v=20, shk=22, ssmk=24, ssmD=26, x=28, Lre=30, Lim=32, Bre=34, Bim=36, Cre=38, Cim=40, logdt=42, Dskip=44, out=46, dbg=48, ws=50)
def sp(n): return 's[%d:%d]' % (P[n], P[n]+1)
sW, sXCD, sIDX = 3, 4, 5
SRD_WS, SRD_OUT, SRD_DBG = 68, 72, 76
def srd(b): return 's[%d:%d]' % (b, b+3)
def vr(b, n): return 'v[%d:%d]' % (b, b+n-1)
def ar(b, n): return 'a[%d:%d]' % (b, b+n-1)

def mk_srd(g, b, ptr, nbytes):
    g.e(f's_mov_b32 s{b}, s{P[ptr]}\ns_mov_b32 s{b+1}, s{P[ptr]+1}\ns_mov_b32 s{b+2}, {nbytes:#x}\ns_mov_b32 s{b+3}, 0x20000')

nstamp = [0]
def stamp(g, i):
    if not DIAG: return
    op = 's_memtime' if OPT.get('cyc') else 's_memrealtime'
    g.e(f'{op} s[100:101]\ns_waitcnt lgkmcnt(0)\ns_mov_b32 s{84+i}, s100')

def diag_out(g, n):
    if not DIAG: return
    g.e(f's_lshl_b32 s13, s2, 2\ns_add_u32 s13, s13, s{sW}\ns_lshl_b32 s13, s13, 6\ns_add_u32 s13, s13, {DIAG_OFF:#x}')
    g.e('s_mov_b64 exec, 1\nv_mov_b32 v1, 0')
    for i in range(n):
        g.e(f'v_mov_b32 v2, s{84+i}\nbuffer_store_dword v2, v1, {srd(SRD_WS)}, s13 offen offset:{4*i}')
    g.e('s_mov_b64 exec, -1')

def get_tag(g, vtag, vzero):
    L = g.newlabel('Ltag'); D = g.newlabel('Ltagd')
    g.e(f's_mov_b32 s15, {SPIN_MAX}')
    g.label(L)
    g.e(f'v_cmp_eq_u32 vcc, 0, v{vtag}\ns_cbranch_vccz {D}')
    g.e(f'buffer_load_dword v{vtag}, v{vzero}, {srd(SRD_DBG)}, 0 offen sc1')
    g.wait_vm0()
    g.e(f's_sub_u32 s15, s15, 1\ns_cmp_lg_u32 s15, 0\ns_cbranch_scc1 {L}')
    g.label(D)

def cmul(g, dr, di, ar_, ai, br, bi):
    g.e(f'v_mul_f32 v{dr}, v{ar_}, v{br}\nv_mul_f32 v{di}, v{ar_}, v{bi}')
    g.e(f'v_fma_f32 v{dr}, -v{ai}, v{bi}, v{dr}\nv_fmac_f32 v{di}, v{ai}, v{br}')
def cfma(g, dr, di, ar_, ai, br, bi, cr, ci):
    g.e(f'v_fma_f32 v{dr}, v{ar_}, v{br}, v{cr}\nv_fma_f32 v{di}, v{ar_}, v{bi}, v{ci}')
    g.e(f'v_fma_f32 v{dr}, -v{ai}, v{bi}, v{dr}\nv_fmac_f32 v{di}, v{ai}, v{br}')

def role_B(g):
    sQ5, sR5, sC, sJ, sRB, sROT, sK = 6, 7, 8, 9, 10, 11, 12
    SRD_X, SRD_BM, SRD_CRE, SRD_CIM = 52, 56, 60, 64
    sWM, sWN, sM0X, sCK, sE0 = 80, 81, 82, 83, 16
    sM0C = 20
    vX, vB = 16, 20
    vAlo, vAhi, vBlo, vBhi = 24, 28, 32, 36
    LR, LI, NLI, L32R, L32I, L64R, L64I, L128R, L128I, C2R, C2I, MR, MI, PR, PI, TAG, ZERO, DSK = range(40, 58)
    L96R, L96I = 62, 63
    VEO = 39
    ACR, ACI = 64, 96
    F = [128, 144]
    g.c('==== role B ====')
    g.e(f'''
    s_mul_i32 s{sQ5}, s{sIDX}, 52
    s_lshr_b32 s{sQ5}, s{sQ5}, 8
    s_mul_i32 s13, s{sQ5}, 5
    s_sub_u32 s{sR5}, s{sIDX}, s13
    s_lshr_b32 s{sC}, s{sXCD}, 1
    s_lshl_b32 s{sC}, s{sC}, 2
    s_add_u32 s{sC}, s{sC}, s{sQ5}
    s_and_b32 s{sJ}, s{sXCD}, 1
    s_mul_i32 s{sJ}, s{sJ}, 5
    s_add_u32 s{sJ}, s{sJ}, s{sR5}
    s_lshl_b32 s{sRB}, s{sXCD}, 2
    s_add_u32 s{sRB}, s{sRB}, s{sQ5}
    s_add_u32 s13, s13, 1
    s_lshr_b32 s13, s13, 1
    s_lshl_b32 s{sROT}, s{sR5}, 1
    s_add_u32 s{sROT}, s{sROT}, s13
    s_sub_u32 s13, s{sROT}, 10
    s_cmp_ge_u32 s{sROT}, 10
    s_cselect_b32 s{sROT}, s13, s{sROT}
    s_lshl_b32 s{sK}, s{sROT}, 7
    s_and_b32 s{sWM}, s{sW}, 1
    s_lshr_b32 s{sWN}, s{sW}, 1
    ''')
    g.e(f'''
    v_lshrrev_b32 v1, 5, v0
    v_lshlrev_b32 v1, 5, v1
    v_bfe_u32 v2, v0, 3, 2
    v_add_u32 v1, v1, v2
    s_lshl_b32 s13, s{sC}, 7
    s_lshl_b32 s14, s{sWN}, 6
    s_add_u32 s13, s13, s14
    s_lshl_b32 s14, s{sWM}, 4
    s_add_u32 s13, s13, s14
    v_add_u32 v1, s13, v1
    v_mul_u32_u24 v1, 1280, v1
    v_lshrrev_b32 v2, 3, v0
    s_lshl_b32 s13, s{sJ}, 6
    s_lshl_b32 s14, s{sWM}, 5
    s_add_u32 s13, s13, s14
    v_add_u32 v2, s13, v2
    v_mul_u32_u24 v2, 1280, v2
    v_and_b32 v3, 7, v0
    v_lshrrev_b32 v4, 4, v0
    v_xor_b32 v3, v3, v4
    v_lshlrev_b32 v3, 4, v3
    v_xor_b32 v4, 64, v3
    ''')
    for i in range(4):
        q = 3 + (i & 1)
        g.e(f'v_add_u32 v{vX+i}, v1, v{q}\nv_add_u32 v{vB+i}, v2, v{q}')
        if i:
            g.e(f'v_add_u32 v{vX+i}, {i*4096}, v{vX+i}\nv_add_u32 v{vB+i}, {i*9216}, v{vB+i}')
    g.e('s_waitcnt lgkmcnt(0)')
    stamp(g, 0)
    mk_srd(g, SRD_DBG, 'dbg', 256)
    g.e(f'v_mov_b32 v{ZERO}, 0')
    Ln = g.newlabel('Lnon')
    g.e(f's_or_b32 s13, s2, s{sW}\ns_cmp_lg_u32 s13, 0\ns_cbranch_scc1 {Ln}')
    g.e(f's_or_b32 s14, s98, 1\nv_mov_b32 v6, s14\ns_mov_b64 exec, 1')
    g.lines.append(f'    buffer_store_dword v6, v{ZERO}, {srd(SRD_DBG)}, 0 offen sc1')
    g.e('s_mov_b64 exec, -1')
    g.label(Ln)
    mk_srd(g, SRD_X, 'x', 2621440)
    g.e(f'''
    s_cmp_ge_u32 s{sW}, 2
    s_cselect_b32 s{SRD_BM}, s{P['Bim']}, s{P['Bre']}
    s_cselect_b32 s{SRD_BM+1}, s{P['Bim']+1}, s{P['Bre']+1}
    s_mov_b32 s{SRD_BM+2}, 819200
    s_mov_b32 s{SRD_BM+3}, 0x20000
    s_lshl_b32 s{sM0X}, s{sW}, 12
    ''')
    def g1_dma(s):
        sb = s & 3
        out = [f's_add_u32 m0, s{sM0X}, {sb*32768}']
        for i in range(4):
            out.append(f'buffer_load_dwordx4 v{vX+i}, {srd(SRD_X)}, s{sK} offen offset:{1024*i} lds')
        out.append(f's_add_u32 m0, s{sM0X}, {sb*32768+16384}')
        for i in range(4):
            out.append(f'buffer_load_dwordx4 v{vB+i}, {srd(SRD_BM)}, s{sK} offen offset:{1024*i} lds')
        out.append(f's_add_u32 s{sK}, s{sK}, 128')
        out.append(f's_cmp_eq_u32 s{sK}, 1280')
        out.append(f's_cselect_b32 s{sK}, 0, s{sK}')
        return out
    for ins in g1_dma(0): g.e(ins, tag='g0')
    g.e(f'''
    v_and_b32 v5, 31, v0
    s_lshl_b32 s13, s{sJ}, 6
    s_lshl_b32 s14, s{sWN}, 5
    s_add_u32 s13, s13, s14
    v_add_lshl_u32 v6, v5, s13, 1
    ''')
    g.e(f'global_load_ushort v8, v6, {sp("Lre")}\nglobal_load_ushort v9, v6, {sp("Lim")}\nglobal_load_ushort v10, v6, {sp("logdt")}', tag='par')
    g.e(f's_lshl_b32 s13, s{sR5}, 7\ns_lshl_b32 s14, s{sW}, 5\ns_add_u32 s13, s13, s14\nv_add_lshl_u32 v7, v5, s13, 1')
    g.e(f'global_load_ushort v{DSK}, v7, {sp("Dskip")}', tag='par')
    for s in (1, 2):
        for ins in g1_dma(s): g.e(ins, tag=f'g{s}')
    mk_srd(g, SRD_CRE, 'Cre', 819200)
    mk_srd(g, SRD_CIM, 'Cim', 819200)
    mk_srd(g, SRD_WS, 'ws', 0x10000000)
    mk_srd(g, SRD_OUT, 'out', 10485760)
    g.e(f'''
    v_lshrrev_b32 v1, 5, v0
    v_bfe_u32 v2, v0, 1, 3
    v_xor_b32 v1, v1, v2
    v_lshlrev_b32 v1, 4, v1
    v_lshl_add_u32 v1, v5, 7, v1
    s_lshl_b32 s13, s{sWM}, 13
    s_lshl_b32 s14, s{sWN}, 12
    s_add_u32 s14, s14, 16384
    ''')
    for ks in range(4):
        g.e(f'v_xor_b32 v2, {32*ks}, v1\nv_add_u32 v{vAlo+ks}, s13, v2\nv_add_u32 v{vBlo+ks}, s14, v2')
        g.e(f'v_add_u32 v{vAhi+ks}, 0x10000, v{vAlo+ks}\nv_add_u32 v{vBhi+ks}, 0x10000, v{vBlo+ks}')
    g.e('v_mov_b32 v58, v1')
    gm = g; g = G()
    g.e(f'''
    v_lshlrev_b32 v8, 16, v8
    v_lshlrev_b32 v9, 16, v9
    v_lshlrev_b32 v10, 16, v10
    v_mul_f32 v10, 0x3fb8aa3b, v10
    v_exp_f32 v10, v10
    v_cvt_pk_bf16_f32 v10, v10, v10
    v_lshlrev_b32 v10, 16, v10
    v_mul_f32 v11, v10, v8
    v_mul_f32 v12, v10, v9
    v_mul_f32 v11, 0x3fb8aa3b, v11
    v_exp_f32 v11, v11
    v_mul_f32 v12, 0.15915494, v12
    v_fract_f32 v12, v12
    v_cos_f32 v13, v12
    v_sin_f32 v14, v12
    v_mul_f32 v{LR}, v11, v13
    v_mul_f32 v{LI}, v11, v14
    v_sub_f32 v{NLI}, 0, v{LI}
    v_add_f32 v11, -1.0, v{LR}
    v_mul_f32 v12, v8, v8
    v_fmac_f32 v12, v9, v9
    v_rcp_f32 v12, v12
    v_mul_f32 v13, v11, v8
    v_fmac_f32 v13, v{LI}, v9
    v_mul_f32 v14, v{LI}, v8
    v_fma_f32 v14, -v11, v9, v14
    v_add_f32 v12, v12, v12
    v_mul_f32 v{C2R}, v13, v12
    v_mul_f32 v{C2I}, v14, v12
    ''')
    a = (LR, LI); tmp = [(8, 9), (10, 11)]
    for n in range(4):
        d = tmp[n & 1]; cmul(g, d[0], d[1], a[0], a[1], a[0], a[1]); a = d
    cmul(g, L32R, L32I, a[0], a[1], a[0], a[1])
    cmul(g, L64R, L64I, L32R, L32I, L32R, L32I)
    cmul(g, L128R, L128I, L64R, L64I, L64R, L64I)
    cmul(g, L96R, L96I, L64R, L64I, L32R, L32I)
    par_fill = [l.strip() for l in g.lines]; g = gm

    def c_setup():
        out = [f's_lshl_b32 s13, s{sR5}, 7', f's_lshl_b32 s14, s{sW}, 5', 's_add_u32 s13, s13, s14',
               f's_lshl_b32 s14, s{sJ}, 6', 's_sub_u32 s13, s13, s14', f's_lshl_b32 s14, s{sWM}, 5', 's_sub_u32 s13, s13, s14',
               's_mul_i32 s13, s13, 1280', f's_lshl_b32 s{sCK}, s{sROT}, 7', f's_lshl_b32 s{sM0C}, s{sW}, 13']
        for i in range(4): out.append(f'v_add_u32 v{vX+i}, s13, v{vB+i}')
        return out
    def c_dma(bf):
        out = []
        for part, sr in ((0, SRD_CRE), (1, SRD_CIM)):
            out.append(f's_add_u32 m0, s{sM0C}, {bf*32768+part*4096}')
            for i in range(4):
                out.append(f'buffer_load_dwordx4 v{vX+i}, {srd(sr)}, s{sCK} offen offset:{1024*i} lds')
        out += [f's_add_u32 s{sCK}, s{sCK}, 128', f's_cmp_eq_u32 s{sCK}, 1280', f's_cselect_b32 s{sCK}, 0, s{sCK}']
        return out
    def creg(u, f):
        return ar(32*u + 4*f, 4) if u < 8 else vr(192 + 32*(u-8) + 4*f, 4)
    def c_read(u, bf):
        for part in range(2):
            for ks in range(4):
                base = (vAhi if bf >= 2 else vAlo) + ks
                g.e(f'ds_read_b128 {creg(u, part*4+ks)}, v{base} offset:{(bf&1)*32768 + part*4096}')

    def g1_reads(s, ks, fb):
        sb = s & 3
        A = (vAhi if sb >= 2 else vAlo) + ks; B = (vBhi if sb >= 2 else vBlo) + ks
        o = (sb & 1) * 32768
        if OPT.get('nords'): return []
        return [f'ds_read_b128 {vr(fb,4)}, v{A} offset:{o}', f'ds_read_b128 {vr(fb+8,4)}, v{B} offset:{o}',
                f'ds_read_b128 {vr(fb+12,4)}, v{B} offset:{o+8192}', f'ds_read_b128 {vr(fb+4,4)}, v{A} offset:{o+4096}']
    def g1_mfma(fb, first):
        out = []
        for it, part in ((0, 0), (0, 1), (1, 0), (1, 1)):
            acc = (ACI if part else ACR) + 16*it
            out.append(f'v_mfma_f32_32x32x16_bf16 {vr(acc,16)}, {vr(fb+4*it,4)}, {vr(fb+8+4*part,4)}, {"0" if first else vr(acc,16)}')
        return out
    def spread(slots, fill):
        n = len(slots); k = len(fill); fi = 0
        for i, sl in enumerate(slots):
            for x in sl: g.e(x)
            tgt = (k * (i + 1) + n - 1) // n
            while fi < min(tgt, k):
                for ins, tag in fill[fi]: g.e(ins, tag=tag)
                fi += 1
    def group_dma(lst, tag):
        items = []; cur = []
        for ins in lst:
            cur.append((ins, tag))
            if ins.startswith('buffer_'): items.append(cur); cur = []
        if cur: items[-1] += cur
        return items
    stamp(g, 1)
    for s in range(10):
        g.c(f'--- G1 stage {s}')
        g.wait_vm(f'g{s}', 'lgkmcnt(0)')
        g.e('s_barrier')
        slots = []
        first = g1_reads(s, 0, F[0])
        if s >= 1:
            mf = g1_mfma(F[1], False)
            slots += [first + [mf[0]]] + [[m] for m in mf[1:]]; first = []
        for ks in range(1, 4):
            mf = g1_mfma(F[(ks-1) & 1], s == 0 and ks == 1)
            slots += [first + g1_reads(s, ks, F[ks & 1]) + ['s_waitcnt lgkmcnt(4)', mf[0]]] + [[m] for m in mf[1:]]; first = []
        if s + 3 <= 9: fill = group_dma(g1_dma(s+3), f'g{s+3}')
        else: fill = group_dma((c_setup() if s == 7 else []) + c_dma((s-1) & 3), 'c1')
        if s == 7: fill[-1].append((f'buffer_load_dword v{TAG}, v{ZERO}, {srd(SRD_DBG)}, 0 offen sc1', 'c1'))
        if s in (2, 3, 4):
            third = (len(par_fill) + 2) // 3
            part = par_fill[(s-2)*third:(s-1)*third]
            per = (len(part) + len(slots) - 1) // len(slots)
            for i, sl in enumerate(slots): sl += part[i*per:(i+1)*per]
        spread(slots, fill)
    g.e('s_waitcnt lgkmcnt(0)\ns_barrier')
    for m in g1_mfma(F[1], False): g.e(m)
    for ks in range(4):
        g.e(f'v_xor_b32 v2, {32*ks}, v58\nv_add_u32 v{vAlo+ks}, s{sM0C}, v2\nv_add_u32 v{vAhi+ks}, 0x10000, v{vAlo+ks}')
    g.e(f"""
    v_lshrrev_b32 v1, 5, v0
    s_lshl_b32 s13, s{sWM}, 1
    v_add_u32 v59, s13, v1
    s_lshl_b32 s13, s{sWN}, 8
    s_add_u32 s13, s13, 0x20000
    v_lshl_add_u32 v60, v5, 3, s13
    v_lshl_add_u32 v61, v59, 9, v60
    s_lshl_b32 s13, s{sWN}, 9
    v_lshl_add_u32 v{VEO}, v5, 4, s13
    s_lshl_b32 s{sE0}, s{sJ}, 14
    s_add_u32 s{sE0}, s{sE0}, {E_OFF:#x}
    s_add_u32 s{sE0+1}, s{sE0}, 4096
    s_add_u32 s{sE0+2}, s{sE0}, 8192
    s_add_u32 s{sE0+3}, s{sE0}, 12288
    """)
    stamp(g, 2)
    h = (ACR, ACI); pp = [(8, 9), (10, 11)]
    slots = []
    for t in range(1, 32):
        d = pp[t & 1]
        slots.append([f'v_fma_f32 v{d[0]}, v{NLI}, v{h[1]}, v{ACR+t}', f'v_fma_f32 v{d[1]}, v{LI}, v{h[0]}, v{ACI+t}',
                      f'v_fmac_f32 v{d[0]}, v{LR}, v{h[0]}', f'v_fmac_f32 v{d[1]}, v{LR}, v{h[1]}'])
        h = d
    spread(slots, group_dma(c_dma(1), 'c1b'))
    g.e(f'ds_write_b64 v61, v[{h[0]}:{h[1]}]\ns_waitcnt lgkmcnt(0)\ns_barrier')
    E = 128
    for sgi in range(4): g.e(f'ds_read_b64 {vr(E+2*sgi,2)}, v60 offset:{512*sgi}')
    g.wait_vm('c1', 'lgkmcnt(0)')
    keep = list(g.vm)
    get_tag(g, TAG, ZERO)
    g.vm = keep
    P2, P3, EE = 8, 10, 12
    cfma(g, P2, P2+1, L32R, L32I, E, E+1, E+2, E+3)
    cfma(g, P3, P3+1, L32R, L32I, P2, P2+1, E+4, E+5)
    cfma(g, EE, EE+2, L32R, L32I, P3, P3+1, E+6, E+7)
    g.e(f'v_mov_b32 v{EE+1}, v{TAG}\nv_mov_b32 v{EE+3}, v{TAG}')
    g.e(f"""
    s_lshl_b32 s13, s{sC}, 10
    s_add_u32 s13, s13, s{sE0}
    s_cmp_eq_u32 s{sWM}, 0
    s_cselect_b32 exec_lo, -1, 0
    s_mov_b32 exec_hi, 0
    """)
    Lp = g.newlabel('Lpub')
    g.e(f's_cbranch_execz {Lp}')
    g.lines.append(f'    buffer_store_dwordx4 {vr(EE,4)}, v{VEO}, {srd(SRD_WS)}, s13 offen sc1')
    g.label(Lp)
    g.e('s_mov_b64 exec, -1')
    stamp(g, 3)
    for u, bf in ((0, 2), (1, 3), (2, 0)): c_read(u, bf)
    XF, DG = 160, 176
    g.e(f"""
    s_lshl_b32 s13, s{sRB}, 6
    v_lshrrev_b32 v1, 2, v0
    v_add_u32 v1, s13, v1
    v_mul_u32_u24 v1, 1280, v1
    v_and_b32 v2, 3, v0
    v_lshl_add_u32 v1, v2, 4, v1
    s_lshl_b32 s13, s{sR5}, 8
    s_lshl_b32 s14, s{sW}, 6
    s_add_u32 s13, s13, s14
    s_add_u32 m0, s{sM0X}, 0x21000
    """)
    for i in range(4):
        g.e(f'buffer_load_dwordx4 v1, {srd(SRD_X)}, s13 offen offset:{1024*i} lds', tag='xf')
        if i < 3: g.e(f's_add_u32 s13, s13, {16*1280-1024}')
    T0, T1, T2, T3 = 1, 2, 3, 4
    g.e(f'v_mov_b32 v{T0}, 1.0\nv_mov_b32 v{T1}, 0\nv_mov_b32 v{T2}, 0\nv_mov_b32 v{T3}, 0')
    for sgi, (mr, mi, pr, pi) in ((1, (L32R, L32I, E, E+1)), (2, (L64R, L64I, P2, P2+1)), (3, (L96R, L96I, P3, P3+1))):
        g.e(f'v_cmp_eq_u32 vcc, {sgi}, v59')
        g.e(f'v_cndmask_b32 v{T0}, v{T0}, v{mr}, vcc\nv_cndmask_b32 v{T1}, v{T1}, v{mi}, vcc\nv_cndmask_b32 v{T2}, v{T2}, v{pr}, vcc\nv_cndmask_b32 v{T3}, v{T3}, v{pi}, vcc')
    cmul(g, MR, MI, T0, T1, C2R, C2I)
    cmul(g, PR, PI, T2, T3, C2R, C2I)
    g.e('s_waitcnt lgkmcnt(0)')
    NE = int(OPT.get('ne', 3))
    slots = []
    for t in range(32):
        tt = 6 + (t & 1)
        slots.append([f'v_mul_f32 v{tt}, v{C2I}, v{ACI+t}', f'v_mul_f32 v{ACI+t}, v{C2R}, v{ACI+t}', f'v_fmac_f32 v{ACI+t}, v{C2I}, v{ACR+t}', f'v_fma_f32 v{ACR+t}, v{C2R}, v{ACR+t}, -v{tt}'])
    fill = []
    for bf in (2, 3, 0): fill += group_dma(c_dma(bf), 'c2')
    spread(slots, fill)
    g.wait_vm('c1b')
    c_read(3, 1)
    SR, SI = 8, 9
    g.e(f'v_mov_b32 v{SR}, 0\nv_mov_b32 v{SI}, 0')
    Lpoll, Lwait, Lchk, Ldone = [g.newlabel(x) for x in ('Lepoll', 'Lewait', 'Lechk', 'Ledone')]
    g.e(f's_cmp_eq_u32 s{sC}, 0\ns_cbranch_scc1 {Ldone}\ns_mov_b32 s15, {SPIN_MAX}')
    keep = list(g.vm)
    g.label(Lpoll)
    for cp in range(15):
        g.e(f'buffer_load_dwordx4 {vr(E+4*cp,4)}, v{VEO}, {srd(SRD_WS)}, s{sE0+(cp>>2)} offen offset:{(cp&3)*1024} sc1')
        if cp < 14: g.e(f's_cmp_eq_u32 s{sC}, {cp+1}\ns_cbranch_scc1 {Lwait}')
    g.label(Lwait)
    g.wait_vm0()
    g.e(f'v_mov_b32 v1, v{TAG}\nv_mov_b32 v2, v{TAG}\nv_mov_b32 v{SR}, 0\nv_mov_b32 v{SI}, 0')
    for cp in range(15):
        b = E + 4*cp
        g.e(f'v_min3_u32 v1, v1, v{b+1}, v{b+3}\nv_max3_u32 v2, v2, v{b+1}, v{b+3}')
        g.e(f'v_fmac_f32 v{b}, v{L128R}, v{SR}\nv_fmac_f32 v{b+2}, v{L128R}, v{SI}')
        g.e(f'v_fma_f32 v{b}, -v{L128I}, v{SI}, v{b}\nv_fma_f32 v{SI}, v{L128I}, v{SR}, v{b+2}\nv_mov_b32 v{SR}, v{b}')
        if cp < 14: g.e(f's_cmp_eq_u32 s{sC}, {cp+1}\ns_cbranch_scc1 {Lchk}')
    g.label(Lchk)
    g.e(f'v_cmp_ne_u32 vcc, v1, v2\ns_cbranch_vccz {Ldone}\ns_sub_u32 s15, s15, 1\ns_cmp_lg_u32 s15, 0\ns_cbranch_scc1 {Lpoll}')
    g.label(Ldone)
    g.vm = keep
    stamp(g, 4)
    cfma(g, 10, 11, MR, MI, SR, SI, PR, PI)
    HP = 128
    for i8 in range(4): g.e(f'v_xor_b32 v{1+i8}, {i8<<2}, v0\nv_lshlrev_b32 v{1+i8}, 4, v{1+i8}')
    g.e(f"""
    s_lshl_b32 s13, s{sC}, 1
    s_add_u32 s13, s13, s{sWM}
    s_mul_i32 s14, s13, 10
    s_add_u32 s14, s14, s{sJ}
    s_lshl_b32 s{sE0}, s14, 14
    s_lshl_b32 s15, s{sWN}, 13
    s_add_u32 s{sE0}, s{sE0}, s15
    s_add_u32 s{sE0}, s{sE0}, {H_OFF:#x}
    s_add_u32 s{sE0+1}, s{sE0}, 4096
    s_lshl_b32 s14, s14, 1
    s_add_u32 s14, s14, s{sWN}
    s_lshl_b32 s{sE0+2}, s14, 7
    s_add_u32 s{sE0+2}, s{sE0+2}, {FH_OFF:#x}
    s_waitcnt lgkmcnt(0)
    """)
    h = (10, 11)
    slots = []
    for t in range(32):
        sl = [f'v_fmac_f32 v{ACR+t}, v{NLI}, v{h[1]}', f'v_fmac_f32 v{ACI+t}, v{LI}, v{h[0]}',
              f'v_fmac_f32 v{ACR+t}, v{LR}, v{h[0]}', f'v_fmac_f32 v{ACI+t}, v{LR}, v{h[1]}']
        h = (ACR+t, ACI+t)
        if t & 1:
            sl += [f'v_cvt_pk_bf16_f32 v{HP+(t>>1)}, v{ACR+t-1}, v{ACR+t}', f'v_cvt_pk_bf16_f32 v{HP+16+(t>>1)}, -v{ACI+t-1}, -v{ACI+t}']
        if t & 7 == 7:
            i8 = t >> 3
            sl += [f'buffer_store_dwordx4 {vr(HP+4*i8,4)}, v{1+i8}, {srd(SRD_WS)}, s{sE0} offen offset:{1024*i8} sc1',
                   f'buffer_store_dwordx4 {vr(HP+16+4*i8,4)}, v{1+i8}, {srd(SRD_WS)}, s{sE0+1} offen offset:{1024*i8} sc1']
        slots.append(sl)
    spread(slots[:24], group_dma(c_dma(1), 'c3'))
    spread(slots[24:], [])
    stamp(g, 5)
    g.wait_vm('c2')
    for u, bf in ((4, 2), (5, 3), (6, 0)): c_read(u, bf)
    g.e(f"""
    v_lshrrev_b32 v2, 5, v0
    v_lshlrev_b32 v1, 6, v5
    v_lshl_add_u32 v1, v2, 4, v1
    s_add_u32 s13, s{sM0X}, 0x21000
    v_add_u32 v1, s13, v1
    """)
    for i in range(2):
        for s_ in range(2):
            g.e(f'ds_read_b128 {vr(XF+8*i+4*s_,4)}, v1 offset:{2048*i+32*s_}')
    g.e(f"""
    v_and_b32 v3, 1, v0
    v_lshlrev_b32 v3, 4, v3
    v_lshlrev_b32 v3, v3, v{DSK}
    v_bfe_u32 v4, v0, 3, 1
    v_cmp_eq_u32 vcc, v4, v2
    v_cndmask_b32 v3, 0, v3, vcc
    v_bfe_u32 v4, v0, 1, 2
    v_bfe_u32 v6, v0, 4, 1
    v_lshl_add_u32 v4, v6, 2, v4
    """)
    for r in range(8):
        g.e(f'v_cmp_eq_u32 vcc, {r}, v4\nv_cndmask_b32 v{DG+r}, 0, v3, vcc')
    TR = 32
    g.e(f"""
    v_bfe_u32 v1, v0, 4, 1
    v_bfe_u32 v2, v0, 1, 1
    v_lshl_add_u32 v1, v1, 1, v2
    v_lshrrev_b32 v2, 5, v0
    v_lshlrev_b32 v2, 1, v2
    v_xor_b32 v2, v2, v1
    v_bfe_u32 v3, v0, 2, 2
    v_lshl_add_u32 v2, v2, 2, v3
    v_lshlrev_b32 v2, 4, v2
    v_lshl_add_u32 v2, v1, 10, v2
    v_and_b32 v3, 1, v0
    v_lshl_add_u32 v{TR}, v3, 3, v2
    v_xor_b32 v{TR+1}, 64, v{TR}
    v_add_u32 v{TR+2}, 0x10000, v{TR}
    v_add_u32 v{TR+3}, 0x10000, v{TR+1}
    v_add_u32 v{TR+4}, 0x20000, v{TR}
    v_add_u32 v{TR+5}, 0x20000, v{TR+1}
    """)
    g.wait_vm0()
    g.e('s_mov_b64 exec, 1')
    g.e(f'buffer_store_dword v{TAG}, v{ZERO}, {srd(SRD_WS)}, s{sE0+2} offen sc1')
    g.e('s_mov_b64 exec, -1')
    stamp(g, 6)
    c_read(7, 1)
    g.e('s_waitcnt lgkmcnt(8)')
    AC2 = 64
    for i in range(2):
        for s_ in range(2):
            g.e(f'v_mfma_f32_32x32x16_bf16 {vr(AC2+16*i,16)}, {vr(XF+8*i+4*s_,4)}, {vr(DG+4*s_,4)}, {"0" if s_ == 0 else vr(AC2+16*i,16)}')
    for bf in (2, 3):
        for ins in c_dma(bf): g.e(ins, tag='c4')
    g.e(f"""
    v_cmp_gt_u32 vcc, 20, v0
    v_cndmask_b32 v1, 0, v0, vcc
    v_lshlrev_b32 v1, 7, v1
    s_mul_i32 s13, s{sRB}, 2560
    s_add_u32 s13, s13, {FH_OFF:#x}
    s_mov_b32 s15, {SPIN_MAX}
    """)
    g.e(f'buffer_load_dword v2, v1, {srd(SRD_WS)}, s13 offen sc1', tag='hp')
    g.wait_vm('c4')
    for u, bf in ((8, 2), (9, 3)): c_read(u, bf)
    Lh, Lhd = g.newlabel('Lhpoll'), g.newlabel('Lhdone')
    g.label(Lh)
    g.wait_vm0()
    g.e(f'v_cmp_ne_u32 vcc, v2, v{TAG}\ns_cbranch_vccz {Lhd}')
    g.e(f'buffer_load_dword v2, v1, {srd(SRD_WS)}, s13 offen sc1')
    g.e(f's_sub_u32 s15, s15, 1\ns_cmp_lg_u32 s15, 0\ns_cbranch_scc1 {Lh}')
    g.label(Lhd)
    g.vm = []
    g.e(f"""
    v_lshlrev_b32 v1, 4, v0
    s_mul_i32 s13, s{sRB}, 163840
    s_add_u32 s13, s13, s{sM0X}
    s_add_u32 s13, s13, {H_OFF:#x}
    s_add_u32 s14, s13, 163840
    s_lshl_b32 s15, s{sROT}, 14
    s_add_u32 s15, s15, s13
    """)
    g.e('s_waitcnt lgkmcnt(0)\ns_barrier')
    stamp(g, 7)
    def h_dma(u):
        out = [f's_add_u32 m0, s{sM0X}, {u*16384}']
        for i in range(4):
            out.append(f'buffer_load_dwordx4 v1, {srd(SRD_WS)}, s15 offen offset:{1024*i} sc1 lds')
        out += ['s_add_u32 s15, s15, 16384', 's_cmp_eq_u32 s15, s14', 's_cselect_b32 s15, s13, s15']
        return group_dma(out, f'h{u}')
    NUP = int(OPT.get('nup', 4))
    for u in range(NUP):
        for it in h_dma(u):
            for ins, tag in it: g.e(ins, tag=tag)
    rest = []
    for u in range(NUP, 10): rest += h_dma(u)
    AF = [96, 104, 112, 120]
    steps = [(u, wn, part, ph) for u in range(10) for wn in range(2) for part in range(2) for ph in range(2)]
    def g2_reads(n):
        u, wn, part, ph = steps[n]; fb = AF[n & 3]
        base = TR + 2*(u >> 2); o = (u & 3)*16384 + (wn*8 + part*4)*1024 + ph*256
        if OPT.get('nords'): return []
        return [f'ds_read_b64_tr_b16 {vr(fb+4*i+2*uu,2)}, v{base+uu} offset:{o+512*i}' for i in range(2) for uu in range(2)]
    def g2_mfma(n):
        u, wn, part, ph = steps[n]; fb = AF[n & 3]
        return [f'v_mfma_f32_32x32x16_bf16 {vr(AC2+16*i,16)}, {vr(fb+4*i,4)}, {creg(u, part*4+2*wn+ph)}, {vr(AC2+16*i,16)}' for i in range(2)]
    DEPTH = 2
    issued = 0
    for n in range(len(steps) + DEPTH):
        if n < len(steps):
            if n % 8 == 0:
                g.wait_vm(f'h{n//8}')
                g.e('s_barrier')
            for r in g2_reads(n): g.e(r)
            issued = n + 1
        m = n - DEPTH
        if m >= 0:
            g.e(f's_waitcnt lgkmcnt({4*(issued-1-m)})')
            mf = g2_mfma(m)
            g.e(mf[0])
            if rest:
                for ins, tag in rest.pop(0): g.e(ins, tag=tag)
            g.e(mf[1])
    stamp(g, 8)
    g.e(f'''
    v_lshrrev_b32 v1, 5, v0
    v_mul_u32_u24 v1, 20480, v1
    v_lshl_add_u32 v1, v5, 2, v1
    s_mul_i32 s13, s{sRB}, {64*5120}
    s_lshl_b32 s14, s{sR5}, 9
    s_add_u32 s13, s13, s14
    s_lshl_b32 s14, s{sW}, 7
    s_add_u32 s13, s13, s14
    s_add_u32 s13, s13, 2560
    ''')
    osc = ' sc1' if OPT.get('osc1') else ''
    prev = 0
    for i in range(2):
        for r in range(16):
            row = 32*i + 8*(r >> 2) + (r & 3)
            if row != prev: g.e(f's_add_u32 s13, s13, {(row-prev)*5120}')
            prev = row
            g.e(f'buffer_store_dword v{AC2+16*i+r}, v1, {srd(SRD_OUT)}, s13 offen{osc}')
    if DIAG:
        g.wait_vm0(); stamp(g, 9); diag_out(g, 10)
    g.e('s_endpgm')

def role_A(g):
    g.e('s_endpgm')

def main():
    g = G()
    g.e(f'''
    s_cmp_ge_u32 s2, 240
    s_cbranch_scc1 L_exit
    s_load_dwordx16 s[16:31], s[0:1], 0
    s_load_dwordx16 s[32:47], s[0:1], 64
    s_load_dwordx4 s[48:51], s[0:1], 128
    s_memrealtime s[98:99]
    s_and_b32 s{sXCD}, s2, 7
    s_lshr_b32 s{sIDX}, s2, 3
    v_lshrrev_b32 v1, 6, v0
    v_and_b32 v0, 63, v0
    v_readfirstlane_b32 s{sW}, v1
    s_cmp_ge_u32 s{sIDX}, 20
    s_cbranch_scc1 L_roleA
    ''')
    role_B(g)
    g.label('L_roleA')
    g.vm = []
    try:
        import gen_a
        gen_a.role_A(g, sys.modules[__name__])
    except ImportError:
        role_A(g)
    g.label('L_exit')
    g.e('s_endpgm')
    body, added = fix_hazards(g.lines)
    ref = open('cdna_kernels/%s.s.ref' % NAME).read().split('\n')
    head = [l for l in ref if l.startswith(';') and '@launch' not in l]
    out = head + ['; @launch grid=(240,1,1) block=(256,1,1) lds=163840',
        '.amdgcn_target "amdgcn-amd-amdhsa--gfx950"', '.text', f'.globl {NAME}_kernel', '.p2align 8',
        f'.type {NAME}_kernel,@function', f'{NAME}_kernel:'] + body + [
        '.section .rodata,"a"', '.p2align 6', f'.amdhsa_kernel {NAME}_kernel',
        '  .amdhsa_next_free_vgpr 512', '  .amdhsa_next_free_sgpr 102', '  .amdhsa_accum_offset 256',
        '  .amdhsa_group_segment_fixed_size 0', '  .amdhsa_kernarg_size 144', '  .amdhsa_user_sgpr_count 2',
        '  .amdhsa_user_sgpr_kernarg_segment_ptr 1', '  .amdhsa_system_sgpr_workgroup_id_x 1',
        '  .amdhsa_float_denorm_mode_32 3', '.end_amdhsa_kernel', '']
    fn = OPT.get('o', 'cdna_kernels/%s.s' % NAME)
    open(fn, 'w').write('\n'.join(out))
    print('wrote', fn, 'lines', len(out), 'nops added', added)

if __name__ == '__main__':
    main()
```

```python
import sys
from asmlib import G, fix_hazards

NAME = "concat_heads__ssm_conv_h3__ssm_conv_s5__prompt"
DIAG = '--diag' in sys.argv
OPT = {a.split('=')[0][2:]: (a.split('=')[1] if '=' in a else '1') for a in sys.argv[1:] if a.startswith('--')}

UR_OFF = 0
H_OFF = 0x400000
E_OFF = 0xA00000
FH_OFF = 0xB00000
FU_OFF = 0xC00000
DIAG_OFF = 0xD00000
SPIN_MAX = 20000

P = dict(q=16, k=18, v=20, shk=22, ssmk=24, ssmD=26, x=28, Lre=30, Lim=32, Bre=34, Bim=36, Cre=38, Cim=40, logdt=42, Dskip=44, out=46, dbg=48, ws=50)
def sp(n): return 's[%d:%d]' % (P[n], P[n]+1)
sW, sXCD, sIDX = 3, 4, 5
SRD_WS, SRD_OUT, SRD_DBG = 68, 72, 76
def srd(b): return 's[%d:%d]' % (b, b+3)
def vr(b, n): return 'v[%d:%d]' % (b, b+n-1)
def ar(b, n): return 'a[%d:%d]' % (b, b+n-1)

def mk_srd(g, b, ptr, nbytes):
    g.e(f's_mov_b32 s{b}, s{P[ptr]}\ns_mov_b32 s{b+1}, s{P[ptr]+1}\ns_mov_b32 s{b+2}, {nbytes:#x}\ns_mov_b32 s{b+3}, 0x20000')

nstamp = [0]
def stamp(g, i):
    if not DIAG: return
    op = 's_memtime' if OPT.get('cyc') else 's_memrealtime'
    g.e(f'{op} s[100:101]\ns_waitcnt lgkmcnt(0)\ns_mov_b32 s{84+i}, s100')

def diag_out(g, n):
    if not DIAG: return
    g.e(f's_lshl_b32 s13, s2, 2\ns_add_u32 s13, s13, s{sW}\ns_lshl_b32 s13, s13, 6\ns_add_u32 s13, s13, {DIAG_OFF:#x}')
    g.e('s_mov_b64 exec, 1\nv_mov_b32 v1, 0')
    for i in range(n):
        g.e(f'v_mov_b32 v2, s{84+i}\nbuffer_store_dword v2, v1, {srd(SRD_WS)}, s13 offen offset:{4*i}')
    if OPT.get('dbgst'):
        L = g.newlabel('Ldbg')
        wg, lst, base = (158, list(range(10)), 1) if n >= 10 else (239, [1, 4, 5, 6, 7], 11)
        g.e(f's_lshl_b32 s13, s{sW}, 10\ns_add_u32 s13, s13, s2\ns_cmp_lg_u32 s13, {wg}\ns_cbranch_scc1 {L}')
        for k, i in enumerate(lst):
            g.e(f'v_mov_b32 v2, s{84+i}\nbuffer_store_dword v2, v1, {srd(SRD_DBG)}, 0 offen offset:{4*(base+k)}')
        g.label(L)
    g.e('s_mov_b64 exec, -1')

def end_spin(g, vtag):
    if not OPT.get('spin'): return
    L = g.newlabel('Lspin')
    g.e(f's_waitcnt vmcnt(0)\nv_readfirstlane_b32 s13, v{vtag}\ns_add_u32 s13, s13, {int(OPT["spin"])}')
    g.label(L)
    g.e(f's_memrealtime s[100:101]\ns_waitcnt lgkmcnt(0)\ns_sub_u32 s14, s100, s13\ns_cmp_lt_i32 s14, 0\ns_cbranch_scc1 {L}')

def get_tag(g, vtag, vzero):
    L = g.newlabel('Ltag'); D = g.newlabel('Ltagd')
    g.e(f's_mov_b32 s15, {SPIN_MAX}')
    g.label(L)
    g.e(f'v_cmp_eq_u32 vcc, 0, v{vtag}\ns_cbranch_vccz {D}')
    g.e(f'buffer_load_dword v{vtag}, v{vzero}, {srd(SRD_DBG)}, 0 offen sc1')
    g.wait_vm0()
    g.e(f's_sub_u32 s15, s15, 1\ns_cmp_lg_u32 s15, 0\ns_cbranch_scc1 {L}')
    g.label(D)

def cmul(g, dr, di, ar_, ai, br, bi):
    g.e(f'v_mul_f32 v{dr}, v{ar_}, v{br}\nv_mul_f32 v{di}, v{ar_}, v{bi}')
    g.e(f'v_fma_f32 v{dr}, -v{ai}, v{bi}, v{dr}\nv_fmac_f32 v{di}, v{ai}, v{br}')
def cfma(g, dr, di, ar_, ai, br, bi, cr, ci):
    g.e(f'v_fma_f32 v{dr}, v{ar_}, v{br}, v{cr}\nv_fma_f32 v{di}, v{ar_}, v{bi}, v{ci}')
    g.e(f'v_fma_f32 v{dr}, -v{ai}, v{bi}, v{dr}\nv_fmac_f32 v{di}, v{ai}, v{br}')

def role_B(g):
    sQ5, sR5, sC, sJ, sRB, sROT, sK = 6, 7, 8, 9, 10, 11, 12
    SRD_X, SRD_BM, SRD_CRE, SRD_CIM = 52, 56, 60, 64
    sWM, sWN, sM0X, sCK, sE0 = 80, 81, 82, 83, 16
    sM0C = 20
    vX, vB = 16, 20
    vAlo, vAhi, vBlo, vBhi = 24, 28, 32, 36
    LR, LI, NLI, L32R, L32I, L64R, L64I, L128R, L128I, C2R, C2I, MR, MI, PR, PI, TAG, ZERO, DSK = range(40, 58)
    L96R, L96I = 62, 63
    VEO = 39
    ACR, ACI = 64, 96
    F = [128, 144]
    g.c('==== role B ====')
    g.e(f'''
    s_mul_i32 s{sQ5}, s{sIDX}, 52
    s_lshr_b32 s{sQ5}, s{sQ5}, 8
    s_mul_i32 s13, s{sQ5}, 5
    s_sub_u32 s{sR5}, s{sIDX}, s13
    s_lshr_b32 s{sC}, s{sXCD}, 1
    s_lshl_b32 s{sC}, s{sC}, 2
    s_add_u32 s{sC}, s{sC}, s{sQ5}
    s_and_b32 s{sJ}, s{sXCD}, 1
    s_mul_i32 s{sJ}, s{sJ}, 5
    s_add_u32 s{sJ}, s{sJ}, s{sR5}
    s_lshl_b32 s{sRB}, s{sXCD}, 2
    s_add_u32 s{sRB}, s{sRB}, s{sQ5}
    s_add_u32 s13, s13, 1
    s_lshr_b32 s13, s13, 1
    s_lshl_b32 s{sROT}, s{sR5}, 1
    s_add_u32 s{sROT}, s{sROT}, s13
    s_sub_u32 s13, s{sROT}, 10
    s_cmp_ge_u32 s{sROT}, 10
    s_cselect_b32 s{sROT}, s13, s{sROT}
    s_lshl_b32 s{sK}, s{sROT}, 7
    s_and_b32 s{sWM}, s{sW}, 1
    s_lshr_b32 s{sWN}, s{sW}, 1
    ''')
    g.e(f'''
    v_lshrrev_b32 v1, 5, v0
    v_lshlrev_b32 v1, 5, v1
    v_bfe_u32 v2, v0, 3, 2
    v_add_u32 v1, v1, v2
    s_lshl_b32 s13, s{sC}, 7
    s_lshl_b32 s14, s{sWN}, 6
    s_add_u32 s13, s13, s14
    s_lshl_b32 s14, s{sWM}, 4
    s_add_u32 s13, s13, s14
    v_add_u32 v1, s13, v1
    v_mul_u32_u24 v1, 1280, v1
    v_lshrrev_b32 v2, 3, v0
    s_lshl_b32 s13, s{sJ}, 6
    s_lshl_b32 s14, s{sWM}, 5
    s_add_u32 s13, s13, s14
    v_add_u32 v2, s13, v2
    v_mul_u32_u24 v2, 1280, v2
    v_and_b32 v3, 7, v0
    v_lshrrev_b32 v4, 4, v0
    v_xor_b32 v3, v3, v4
    v_lshlrev_b32 v3, 4, v3
    v_xor_b32 v4, 64, v3
    ''')
    for i in range(4):
        q = 3 + (i & 1)
        g.e(f'v_add_u32 v{vX+i}, v1, v{q}\nv_add_u32 v{vB+i}, v2, v{q}')
        if i:
            g.e(f'v_add_u32 v{vX+i}, {i*4096}, v{vX+i}\nv_add_u32 v{vB+i}, {i*9216}, v{vB+i}')
    g.e('s_waitcnt lgkmcnt(0)')
    stamp(g, 0)
    mk_srd(g, SRD_DBG, 'dbg', 256)
    g.e(f'v_mov_b32 v{ZERO}, 0')
    Ln = g.newlabel('Lnon')
    g.e(f's_or_b32 s13, s2, s{sW}\ns_cmp_lg_u32 s13, 0\ns_cbranch_scc1 {Ln}')
    g.e(f's_or_b32 s14, s98, 1\nv_mov_b32 v6, s14\ns_mov_b64 exec, 1')
    g.lines.append(f'    buffer_store_dword v6, v{ZERO}, {srd(SRD_DBG)}, 0 offen sc1')
    g.e('s_mov_b64 exec, -1')
    g.label(Ln)
    mk_srd(g, SRD_X, 'x', 2621440)
    g.e(f'''
    s_cmp_ge_u32 s{sW}, 2
    s_cselect_b32 s{SRD_BM}, s{P['Bim']}, s{P['Bre']}
    s_cselect_b32 s{SRD_BM+1}, s{P['Bim']+1}, s{P['Bre']+1}
    s_mov_b32 s{SRD_BM+2}, 819200
    s_mov_b32 s{SRD_BM+3}, 0x20000
    s_lshl_b32 s{sM0X}, s{sW}, 12
    ''')
    def g1_dma(s):
        sb = s & 3
        out = [f's_add_u32 m0, s{sM0X}, {sb*32768}']
        for i in range(4):
            out.append(f'buffer_load_dwordx4 v{vX+i}, {srd(SRD_X)}, s{sK} offen offset:{1024*i} lds')
        out.append(f's_add_u32 m0, s{sM0X}, {sb*32768+16384}')
        for i in range(4):
            out.append(f'buffer_load_dwordx4 v{vB+i}, {srd(SRD_BM)}, s{sK} offen offset:{1024*i} lds')
        out.append(f's_add_u32 s{sK}, s{sK}, 128')
        out.append(f's_cmp_eq_u32 s{sK}, 1280')
        out.append(f's_cselect_b32 s{sK}, 0, s{sK}')
        return out
    for ins in g1_dma(0): g.e(ins, tag='g0')
    g.e(f'''
    v_and_b32 v5, 31, v0
    s_lshl_b32 s13, s{sJ}, 6
    s_lshl_b32 s14, s{sWN}, 5
    s_add_u32 s13, s13, s14
    v_add_lshl_u32 v6, v5, s13, 1
    ''')
    g.e(f'global_load_ushort v8, v6, {sp("Lre")}\nglobal_load_ushort v9, v6, {sp("Lim")}\nglobal_load_ushort v10, v6, {sp("logdt")}', tag='par')
    g.e(f's_lshl_b32 s13, s{sR5}, 7\ns_lshl_b32 s14, s{sW}, 5\ns_add_u32 s13, s13, s14\nv_add_lshl_u32 v7, v5, s13, 1')
    g.e(f'global_load_ushort v{DSK}, v7, {sp("Dskip")}', tag='par')
    for s in (1, 2):
        for ins in g1_dma(s): g.e(ins, tag=f'g{s}')
    mk_srd(g, SRD_CRE, 'Cre', 819200)
    mk_srd(g, SRD_CIM, 'Cim', 819200)
    mk_srd(g, SRD_WS, 'ws', 0x10000000)
    mk_srd(g, SRD_OUT, 'out', 10485760)
    g.e(f'''
    v_lshrrev_b32 v1, 5, v0
    v_bfe_u32 v2, v0, 1, 3
    v_xor_b32 v1, v1, v2
    v_lshlrev_b32 v1, 4, v1
    v_lshl_add_u32 v1, v5, 7, v1
    s_lshl_b32 s13, s{sWM}, 13
    s_lshl_b32 s14, s{sWN}, 12
    s_add_u32 s14, s14, 16384
    ''')
    for ks in range(4):
        g.e(f'v_xor_b32 v2, {32*ks}, v1\nv_add_u32 v{vAlo+ks}, s13, v2\nv_add_u32 v{vBlo+ks}, s14, v2')
        g.e(f'v_add_u32 v{vAhi+ks}, 0x10000, v{vAlo+ks}\nv_add_u32 v{vBhi+ks}, 0x10000, v{vBlo+ks}')
    g.e('v_mov_b32 v58, v1')
    gm = g; g = G()
    g.e(f'''
    v_lshlrev_b32 v8, 16, v8
    v_lshlrev_b32 v9, 16, v9
    v_lshlrev_b32 v10, 16, v10
    v_mul_f32 v10, 0x3fb8aa3b, v10
    v_exp_f32 v10, v10
    v_cvt_pk_bf16_f32 v10, v10, v10
    v_lshlrev_b32 v10, 16, v10
    v_mul_f32 v11, v10, v8
    v_mul_f32 v12, v10, v9
    v_mul_f32 v11, 0x3fb8aa3b, v11
    v_exp_f32 v11, v11
    v_mul_f32 v12, 0.15915494, v12
    v_fract_f32 v12, v12
    v_cos_f32 v13, v12
    v_sin_f32 v14, v12
    v_mul_f32 v{LR}, v11, v13
    v_mul_f32 v{LI}, v11, v14
    v_sub_f32 v{NLI}, 0, v{LI}
    v_add_f32 v11, -1.0, v{LR}
    v_mul_f32 v12, v8, v8
    v_fmac_f32 v12, v9, v9
    v_rcp_f32 v12, v12
    v_mul_f32 v13, v11, v8
    v_fmac_f32 v13, v{LI}, v9
    v_mul_f32 v14, v{LI}, v8
    v_fma_f32 v14, -v11, v9, v14
    v_add_f32 v12, v12, v12
    v_mul_f32 v{C2R}, v13, v12
    v_mul_f32 v{C2I}, v14, v12
    ''')
    a = (LR, LI); tmp = [(8, 9), (10, 11)]
    for n in range(4):
        d = tmp[n & 1]; cmul(g, d[0], d[1], a[0], a[1], a[0], a[1]); a = d
    cmul(g, L32R, L32I, a[0], a[1], a[0], a[1])
    cmul(g, L64R, L64I, L32R, L32I, L32R, L32I)
    cmul(g, L128R, L128I, L64R, L64I, L64R, L64I)
    cmul(g, L96R, L96I, L64R, L64I, L32R, L32I)
    par_fill = [l.strip() for l in g.lines]; g = gm

    def c_setup():
        out = [f's_lshl_b32 s13, s{sR5}, 7', f's_lshl_b32 s14, s{sW}, 5', 's_add_u32 s13, s13, s14',
               f's_lshl_b32 s14, s{sJ}, 6', 's_sub_u32 s13, s13, s14', f's_lshl_b32 s14, s{sWM}, 5', 's_sub_u32 s13, s13, s14',
               's_mul_i32 s13, s13, 1280', f's_lshl_b32 s{sCK}, s{sROT}, 7', f's_lshl_b32 s{sM0C}, s{sW}, 13']
        for i in range(4): out.append(f'v_add_u32 v{vX+i}, s13, v{vB+i}')
        return out
    def c_dma(bf):
        out = []
        for part, sr in ((0, SRD_CRE), (1, SRD_CIM)):
            out.append(f's_add_u32 m0, s{sM0C}, {bf*32768+part*4096}')
            for i in range(4):
                out.append(f'buffer_load_dwordx4 v{vX+i}, {srd(sr)}, s{sCK} offen offset:{1024*i} lds')
        out += [f's_add_u32 s{sCK}, s{sCK}, 128', f's_cmp_eq_u32 s{sCK}, 1280', f's_cselect_b32 s{sCK}, 0, s{sCK}']
        return out
    def creg(u, f):
        return ar(32*u + 4*f, 4) if u < 8 else vr(192 + 32*(u-8) + 4*f, 4)
    def c_read(u, bf):
        for part in range(2):
            for ks in range(4):
                base = (vAhi if bf >= 2 else vAlo) + ks
                g.e(f'ds_read_b128 {creg(u, part*4+ks)}, v{base} offset:{(bf&1)*32768 + part*4096}')

    def g1_reads(s, ks, fb):
        sb = s & 3
        A = (vAhi if sb >= 2 else vAlo) + ks; B = (vBhi if sb >= 2 else vBlo) + ks
        o = (sb & 1) * 32768
        if OPT.get('nords'): return []
        return [f'ds_read_b128 {vr(fb,4)}, v{A} offset:{o}', f'ds_read_b128 {vr(fb+8,4)}, v{B} offset:{o}',
                f'ds_read_b128 {vr(fb+12,4)}, v{B} offset:{o+8192}', f'ds_read_b128 {vr(fb+4,4)}, v{A} offset:{o+4096}']
    def g1_mfma(fb, first):
        out = []
        for it, part in ((0, 0), (0, 1), (1, 0), (1, 1)):
            acc = (ACI if part else ACR) + 16*it
            out.append(f'v_mfma_f32_32x32x16_bf16 {vr(acc,16)}, {vr(fb+4*it,4)}, {vr(fb+8+4*part,4)}, {"0" if first else vr(acc,16)}')
        return out
    def spread(slots, fill):
        n = len(slots); k = len(fill); fi = 0
        for i, sl in enumerate(slots):
            for x in sl: g.e(x)
            tgt = (k * (i + 1) + n - 1) // n
            while fi < min(tgt, k):
                for ins, tag in fill[fi]: g.e(ins, tag=tag)
                fi += 1
    def group_dma(lst, tag):
        items = []; cur = []
        for ins in lst:
            cur.append((ins, tag))
            if ins.startswith('buffer_'): items.append(cur); cur = []
        if cur: items[-1] += cur
        return items
    stamp(g, 1)
    for s in range(10):
        g.c(f'--- G1 stage {s}')
        g.wait_vm(f'g{s}', 'lgkmcnt(0)')
        g.e('s_barrier')
        slots = []
        first = g1_reads(s, 0, F[0])
        if s >= 1:
            mf = g1_mfma(F[1], False)
            slots += [first + [mf[0]]] + [[m] for m in mf[1:]]; first = []
        for ks in range(1, 4):
            mf = g1_mfma(F[(ks-1) & 1], s == 0 and ks == 1)
            slots += [first + g1_reads(s, ks, F[ks & 1]) + ['s_waitcnt lgkmcnt(4)', mf[0]]] + [[m] for m in mf[1:]]; first = []
        if s + 3 <= 9: fill = group_dma(g1_dma(s+3), f'g{s+3}')
        else: fill = group_dma((c_setup() if s == 7 else []) + c_dma((s-1) & 3), 'c1')
        if s == 7: fill[-1].append((f'buffer_load_dword v{TAG}, v{ZERO}, {srd(SRD_DBG)}, 0 offen sc1', 'c1'))
        if s in (2, 3, 4):
            third = (len(par_fill) + 2) // 3
            part = par_fill[(s-2)*third:(s-1)*third]
            per = (len(part) + len(slots) - 1) // len(slots)
            for i, sl in enumerate(slots): sl += part[i*per:(i+1)*per]
        spread(slots, fill)
    g.e('s_waitcnt lgkmcnt(0)\ns_barrier')
    for m in g1_mfma(F[1], False): g.e(m)
    for ks in range(4):
        g.e(f'v_xor_b32 v2, {32*ks}, v58\nv_add_u32 v{vAlo+ks}, s{sM0C}, v2\nv_add_u32 v{vAhi+ks}, 0x10000, v{vAlo+ks}')
    g.e(f"""
    v_lshrrev_b32 v1, 5, v0
    s_lshl_b32 s13, s{sWM}, 1
    v_add_u32 v59, s13, v1
    s_lshl_b32 s13, s{sWN}, 8
    s_add_u32 s13, s13, 0x20000
    v_lshl_add_u32 v60, v5, 3, s13
    v_lshl_add_u32 v61, v59, 9, v60
    s_lshl_b32 s13, s{sWN}, 9
    v_lshl_add_u32 v{VEO}, v5, 4, s13
    s_lshl_b32 s{sE0}, s{sJ}, 14
    s_add_u32 s{sE0}, s{sE0}, {E_OFF:#x}
    s_add_u32 s{sE0+1}, s{sE0}, 4096
    s_add_u32 s{sE0+2}, s{sE0}, 8192
    s_add_u32 s{sE0+3}, s{sE0}, 12288
    """)
    stamp(g, 2)
    h = (ACR, ACI); pp = [(8, 9), (10, 11)]
    slots = []
    for t in range(1, 32):
        d = pp[t & 1]
        slots.append([f'v_fma_f32 v{d[0]}, v{NLI}, v{h[1]}, v{ACR+t}', f'v_fma_f32 v{d[1]}, v{LI}, v{h[0]}, v{ACI+t}',
                      f'v_fmac_f32 v{d[0]}, v{LR}, v{h[0]}', f'v_fmac_f32 v{d[1]}, v{LR}, v{h[1]}'])
        h = d
    spread(slots, group_dma(c_dma(1), 'c1b'))
    g.e(f'ds_write_b64 v61, v[{h[0]}:{h[1]}]\ns_waitcnt lgkmcnt(0)\ns_barrier')
    E = 128
    for sgi in range(4): g.e(f'ds_read_b64 {vr(E+2*sgi,2)}, v60 offset:{512*sgi}')
    g.wait_vm('c1', 'lgkmcnt(0)')
    keep = list(g.vm)
    get_tag(g, TAG, ZERO)
    g.vm = keep
    P2, P3, EE = 8, 10, 12
    cfma(g, P2, P2+1, L32R, L32I, E, E+1, E+2, E+3)
    cfma(g, P3, P3+1, L32R, L32I, P2, P2+1, E+4, E+5)
    cfma(g, EE, EE+2, L32R, L32I, P3, P3+1, E+6, E+7)
    g.e(f'v_mov_b32 v{EE+1}, v{TAG}\nv_mov_b32 v{EE+3}, v{TAG}')
    g.e(f"""
    s_lshl_b32 s13, s{sC}, 10
    s_add_u32 s13, s13, s{sE0}
    s_cmp_eq_u32 s{sWM}, 0
    s_cselect_b32 exec_lo, -1, 0
    s_mov_b32 exec_hi, 0
    """)
    Lp = g.newlabel('Lpub')
    g.e(f's_cbranch_execz {Lp}')
    g.lines.append(f'    buffer_store_dwordx4 {vr(EE,4)}, v{VEO}, {srd(SRD_WS)}, s13 offen sc1')
    g.label(Lp)
    g.e('s_mov_b64 exec, -1')
    stamp(g, 3)
    for u, bf in ((0, 2), (1, 3), (2, 0)): c_read(u, bf)
    XF, DG = 160, 176
    g.e(f"""
    s_lshl_b32 s13, s{sRB}, 6
    v_lshrrev_b32 v1, 2, v0
    v_add_u32 v1, s13, v1
    v_mul_u32_u24 v1, 1280, v1
    v_and_b32 v2, 3, v0
    v_lshl_add_u32 v1, v2, 4, v1
    s_lshl_b32 s13, s{sR5}, 8
    s_lshl_b32 s14, s{sW}, 6
    s_add_u32 s13, s13, s14
    s_add_u32 m0, s{sM0X}, 0x21000
    """)
    for i in range(4):
        g.e(f'buffer_load_dwordx4 v1, {srd(SRD_X)}, s13 offen offset:{1024*i} lds', tag='xf')
        if i < 3: g.e(f's_add_u32 s13, s13, {16*1280-1024}')
    T0, T1, T2, T3 = 1, 2, 3, 4
    g.e(f'v_mov_b32 v{T0}, 1.0\nv_mov_b32 v{T1}, 0\nv_mov_b32 v{T2}, 0\nv_mov_b32 v{T3}, 0')
    for sgi, (mr, mi, pr, pi) in ((1, (L32R, L32I, E, E+1)), (2, (L64R, L64I, P2, P2+1)), (3, (L96R, L96I, P3, P3+1))):
        g.e(f'v_cmp_eq_u32 vcc, {sgi}, v59')
        g.e(f'v_cndmask_b32 v{T0}, v{T0}, v{mr}, vcc\nv_cndmask_b32 v{T1}, v{T1}, v{mi}, vcc\nv_cndmask_b32 v{T2}, v{T2}, v{pr}, vcc\nv_cndmask_b32 v{T3}, v{T3}, v{pi}, vcc')
    cmul(g, MR, MI, T0, T1, C2R, C2I)
    cmul(g, PR, PI, T2, T3, C2R, C2I)
    g.e('s_waitcnt lgkmcnt(0)')
    NE = int(OPT.get('ne', 3))
    slots = []
    for t in range(32):
        tt = 6 + (t & 1)
        slots.append([f'v_mul_f32 v{tt}, v{C2I}, v{ACI+t}', f'v_mul_f32 v{ACI+t}, v{C2R}, v{ACI+t}', f'v_fmac_f32 v{ACI+t}, v{C2I}, v{ACR+t}', f'v_fma_f32 v{ACR+t}, v{C2R}, v{ACR+t}, -v{tt}'])
    fill = []
    for bf in (2, 3, 0): fill += group_dma(c_dma(bf), 'c2')
    spread(slots, fill)
    g.wait_vm('c1b')
    c_read(3, 1)
    SR, SI = 8, 9
    g.e(f'v_mov_b32 v{SR}, 0\nv_mov_b32 v{SI}, 0')
    Lpoll, Lwait, Lchk, Ldone = [g.newlabel(x) for x in ('Lepoll', 'Lewait', 'Lechk', 'Ledone')]
    g.e(f's_cmp_eq_u32 s{sC}, 0\ns_cbranch_scc1 {Ldone}\ns_mov_b32 s15, {SPIN_MAX}')
    keep = list(g.vm)
    g.label(Lpoll)
    for cp in range(15):
        g.e(f'buffer_load_dwordx4 {vr(E+4*cp,4)}, v{VEO}, {srd(SRD_WS)}, s{sE0+(cp>>2)} offen offset:{(cp&3)*1024} sc1')
        if cp < 14: g.e(f's_cmp_eq_u32 s{sC}, {cp+1}\ns_cbranch_scc1 {Lwait}')
    g.label(Lwait)
    g.wait_vm0()
    g.e(f'v_mov_b32 v1, v{TAG}\nv_mov_b32 v2, v{TAG}\nv_mov_b32 v{SR}, 0\nv_mov_b32 v{SI}, 0')
    for cp in range(15):
        b = E + 4*cp
        g.e(f'v_min3_u32 v1, v1, v{b+1}, v{b+3}\nv_max3_u32 v2, v2, v{b+1}, v{b+3}')
        g.e(f'v_fmac_f32 v{b}, v{L128R}, v{SR}\nv_fmac_f32 v{b+2}, v{L128R}, v{SI}')
        g.e(f'v_fma_f32 v{b}, -v{L128I}, v{SI}, v{b}\nv_fma_f32 v{SI}, v{L128I}, v{SR}, v{b+2}\nv_mov_b32 v{SR}, v{b}')
        if cp < 14: g.e(f's_cmp_eq_u32 s{sC}, {cp+1}\ns_cbranch_scc1 {Lchk}')
    g.label(Lchk)
    g.e(f'v_cmp_ne_u32 vcc, v1, v2\ns_cbranch_vccz {Ldone}\ns_sub_u32 s15, s15, 1\ns_cmp_lg_u32 s15, 0\ns_cbranch_scc1 {Lpoll}')
    g.label(Ldone)
    g.vm = keep
    stamp(g, 4)
    cfma(g, 10, 11, MR, MI, SR, SI, PR, PI)
    HP = 128
    for i8 in range(4): g.e(f'v_xor_b32 v{1+i8}, {i8<<2}, v0\nv_lshlrev_b32 v{1+i8}, 4, v{1+i8}')
    g.e(f"""
    s_lshl_b32 s13, s{sC}, 1
    s_add_u32 s13, s13, s{sWM}
    s_mul_i32 s14, s13, 10
    s_add_u32 s14, s14, s{sJ}
    s_lshl_b32 s{sE0}, s14, 14
    s_lshl_b32 s15, s{sWN}, 13
    s_add_u32 s{sE0}, s{sE0}, s15
    s_add_u32 s{sE0}, s{sE0}, {H_OFF:#x}
    s_add_u32 s{sE0+1}, s{sE0}, 4096
    s_lshl_b32 s14, s14, 1
    s_add_u32 s14, s14, s{sWN}
    s_lshl_b32 s{sE0+2}, s14, 7
    s_add_u32 s{sE0+2}, s{sE0+2}, {FH_OFF:#x}
    s_waitcnt lgkmcnt(0)
    """)
    h = (10, 11)
    slots = []
    for t in range(32):
        sl = [f'v_fmac_f32 v{ACR+t}, v{NLI}, v{h[1]}', f'v_fmac_f32 v{ACI+t}, v{LI}, v{h[0]}',
              f'v_fmac_f32 v{ACR+t}, v{LR}, v{h[0]}', f'v_fmac_f32 v{ACI+t}, v{LR}, v{h[1]}']
        h = (ACR+t, ACI+t)
        if t & 1:
            sl += [f'v_cvt_pk_bf16_f32 v{HP+(t>>1)}, v{ACR+t-1}, v{ACR+t}', f'v_cvt_pk_bf16_f32 v{HP+16+(t>>1)}, -v{ACI+t-1}, -v{ACI+t}']
        if t & 7 == 7:
            i8 = t >> 3
            sl += [f'buffer_store_dwordx4 {vr(HP+4*i8,4)}, v{1+i8}, {srd(SRD_WS)}, s{sE0} offen offset:{1024*i8} sc1',
                   f'buffer_store_dwordx4 {vr(HP+16+4*i8,4)}, v{1+i8}, {srd(SRD_WS)}, s{sE0+1} offen offset:{1024*i8} sc1']
        slots.append(sl)
    spread(slots[:24], group_dma(c_dma(1), 'c3'))
    spread(slots[24:], [])
    stamp(g, 5)
    g.wait_vm('c2')
    for u, bf in ((4, 2), (5, 3), (6, 0)): c_read(u, bf)
    g.e(f"""
    v_lshrrev_b32 v2, 5, v0
    v_lshlrev_b32 v1, 6, v5
    v_lshl_add_u32 v1, v2, 4, v1
    s_add_u32 s13, s{sM0X}, 0x21000
    v_add_u32 v1, s13, v1
    """)
    for i in range(2):
        for s_ in range(2):
            g.e(f'ds_read_b128 {vr(XF+8*i+4*s_,4)}, v1 offset:{2048*i+32*s_}')
    g.e(f"""
    v_and_b32 v3, 1, v0
    v_lshlrev_b32 v3, 4, v3
    v_lshlrev_b32 v3, v3, v{DSK}
    v_bfe_u32 v4, v0, 3, 1
    v_cmp_eq_u32 vcc, v4, v2
    v_cndmask_b32 v3, 0, v3, vcc
    v_bfe_u32 v4, v0, 1, 2
    v_bfe_u32 v6, v0, 4, 1
    v_lshl_add_u32 v4, v6, 2, v4
    """)
    for r in range(8):
        g.e(f'v_cmp_eq_u32 vcc, {r}, v4\nv_cndmask_b32 v{DG+r}, 0, v3, vcc')
    TR = 32
    g.e(f"""
    v_bfe_u32 v1, v0, 4, 1
    v_bfe_u32 v2, v0, 1, 1
    v_lshl_add_u32 v1, v1, 1, v2
    v_lshrrev_b32 v2, 5, v0
    v_lshlrev_b32 v2, 1, v2
    v_xor_b32 v2, v2, v1
    v_bfe_u32 v3, v0, 2, 2
    v_lshl_add_u32 v2, v2, 2, v3
    v_lshlrev_b32 v2, 4, v2
    v_lshl_add_u32 v2, v1, 10, v2
    v_and_b32 v3, 1, v0
    v_lshl_add_u32 v{TR}, v3, 3, v2
    v_xor_b32 v{TR+1}, 64, v{TR}
    v_add_u32 v{TR+2}, 0x10000, v{TR}
    v_add_u32 v{TR+3}, 0x10000, v{TR+1}
    v_add_u32 v{TR+4}, 0x20000, v{TR}
    v_add_u32 v{TR+5}, 0x20000, v{TR+1}
    """)
    g.wait_vm0()
    g.e('s_mov_b64 exec, 1')
    g.e(f'buffer_store_dword v{TAG}, v{ZERO}, {srd(SRD_WS)}, s{sE0+2} offen sc1')
    g.e('s_mov_b64 exec, -1')
    stamp(g, 6)
    c_read(7, 1)
    g.e('s_waitcnt lgkmcnt(8)')
    AC2 = 64
    for i in range(2):
        for s_ in range(2):
            g.e(f'v_mfma_f32_32x32x16_bf16 {vr(AC2+16*i,16)}, {vr(XF+8*i+4*s_,4)}, {vr(DG+4*s_,4)}, {"0" if s_ == 0 else vr(AC2+16*i,16)}')
    for bf in (2, 3):
        for ins in c_dma(bf): g.e(ins, tag='c4')
    g.e(f"""
    v_cmp_gt_u32 vcc, 20, v0
    v_cndmask_b32 v1, 0, v0, vcc
    v_lshlrev_b32 v1, 7, v1
    s_mul_i32 s13, s{sRB}, 2560
    s_add_u32 s13, s13, {FH_OFF:#x}
    s_mov_b32 s15, {SPIN_MAX}
    """)
    g.e(f'buffer_load_dword v2, v1, {srd(SRD_WS)}, s13 offen sc1', tag='hp')
    g.wait_vm('c4')
    for u, bf in ((8, 2), (9, 3)): c_read(u, bf)
    Lh, Lhd = g.newlabel('Lhpoll'), g.newlabel('Lhdone')
    g.label(Lh)
    g.wait_vm0()
    g.e(f'v_cmp_ne_u32 vcc, v2, v{TAG}\ns_cbranch_vccz {Lhd}')
    g.e(f'buffer_load_dword v2, v1, {srd(SRD_WS)}, s13 offen sc1')
    g.e(f's_sub_u32 s15, s15, 1\ns_cmp_lg_u32 s15, 0\ns_cbranch_scc1 {Lh}')
    g.label(Lhd)
    g.vm = []
    g.e(f"""
    v_lshlrev_b32 v1, 4, v0
    s_mul_i32 s13, s{sRB}, 163840
    s_add_u32 s13, s13, s{sM0X}
    s_add_u32 s13, s13, {H_OFF:#x}
    s_add_u32 s14, s13, 163840
    s_lshl_b32 s15, s{sROT}, 14
    s_add_u32 s15, s15, s13
    """)
    g.e('s_waitcnt lgkmcnt(0)\ns_barrier')
    stamp(g, 7)
    def h_dma(u):
        out = [f's_add_u32 m0, s{sM0X}, {u*16384}']
        for i in range(4):
            out.append(f'buffer_load_dwordx4 v1, {srd(SRD_WS)}, s15 offen offset:{1024*i} sc1 lds')
        out += ['s_add_u32 s15, s15, 16384', 's_cmp_eq_u32 s15, s14', 's_cselect_b32 s15, s13, s15']
        return group_dma(out, f'h{u}')
    NUP = int(OPT.get('nup', 4))
    for u in range(NUP):
        for it in h_dma(u):
            for ins, tag in it: g.e(ins, tag=tag)
    rest = []
    for u in range(NUP, 10): rest += h_dma(u)
    AF = [96, 104, 112, 120]
    steps = [(u, wn, part, ph) for u in range(10) for wn in range(2) for part in range(2) for ph in range(2)]
    def g2_reads(n):
        u, wn, part, ph = steps[n]; fb = AF[n & 3]
        base = TR + 2*(u >> 2); o = (u & 3)*16384 + (wn*8 + part*4)*1024 + ph*256
        if OPT.get('nords'): return []
        return [f'ds_read_b64_tr_b16 {vr(fb+4*i+2*uu,2)}, v{base+uu} offset:{o+512*i}' for i in range(2) for uu in range(2)]
    def g2_mfma(n):
        u, wn, part, ph = steps[n]; fb = AF[n & 3]
        return [f'v_mfma_f32_32x32x16_bf16 {vr(AC2+16*i,16)}, {vr(fb+4*i,4)}, {creg(u, part*4+2*wn+ph)}, {vr(AC2+16*i,16)}' for i in range(2)]
    DEPTH = 2
    issued = 0
    for n in range(len(steps) + DEPTH):
        if n < len(steps):
            if n % 8 == 0:
                g.wait_vm(f'h{n//8}')
                g.e('s_barrier')
            for r in g2_reads(n): g.e(r)
            issued = n + 1
        m = n - DEPTH
        if m >= 0:
            g.e(f's_waitcnt lgkmcnt({4*(issued-1-m)})')
            mf = g2_mfma(m)
            g.e(mf[0])
            if rest:
                for ins, tag in rest.pop(0): g.e(ins, tag=tag)
            g.e(mf[1])
    stamp(g, 8)
    g.e(f'''
    v_lshrrev_b32 v1, 5, v0
    v_mul_u32_u24 v1, 20480, v1
    v_lshl_add_u32 v1, v5, 2, v1
    s_mul_i32 s13, s{sRB}, {64*5120}
    s_lshl_b32 s14, s{sR5}, 9
    s_add_u32 s13, s13, s14
    s_lshl_b32 s14, s{sW}, 7
    s_add_u32 s13, s13, s14
    s_add_u32 s13, s13, 2560
    ''')
    osc = ' sc1' if OPT.get('osc1') else ''
    prev = 0
    for i in range(2):
        for r in range(16):
            row = 32*i + 8*(r >> 2) + (r & 3)
            if row != prev: g.e(f's_add_u32 s13, s13, {(row-prev)*5120}')
            prev = row
            g.e(f'buffer_store_dword v{AC2+16*i+r}, v1, {srd(SRD_OUT)}, s13 offen{osc}')
    if DIAG:
        g.wait_vm0(); stamp(g, 9); diag_out(g, 10)
    end_spin(g, TAG)
    g.e('s_endpgm')

def role_A(g):
    g.e('s_endpgm')

def main():
    g = G()
    g.e(f'''
    s_cmp_ge_u32 s2, 240
    s_cbranch_scc1 L_exit
    s_load_dwordx16 s[16:31], s[0:1], 0
    s_load_dwordx16 s[32:47], s[0:1], 64
    s_load_dwordx4 s[48:51], s[0:1], 128
    s_memrealtime s[98:99]
    s_and_b32 s{sXCD}, s2, 7
    s_lshr_b32 s{sIDX}, s2, 3
    v_lshrrev_b32 v1, 6, v0
    v_and_b32 v0, 63, v0
    v_readfirstlane_b32 s{sW}, v1
    s_cmp_ge_u32 s{sIDX}, 20
    s_cbranch_scc1 L_roleA
    ''')
    role_B(g)
    g.label('L_roleA')
    g.vm = []
    try:
        import gen_a
        gen_a.role_A(g, sys.modules[__name__])
    except ImportError:
        role_A(g)
    g.label('L_exit')
    g.e('s_endpgm')
    body, added = fix_hazards(g.lines)
    ref = open('cdna_kernels/%s.s.ref' % NAME).read().split('\n')
    head = [l for l in ref if l.startswith(';') and '@launch' not in l]
    out = head + ['; @launch grid=(240,1,1) block=(256,1,1) lds=163840',
        '.amdgcn_target "amdgcn-amd-amdhsa--gfx950"', '.text', f'.globl {NAME}_kernel', '.p2align 8',
        f'.type {NAME}_kernel,@function', f'{NAME}_kernel:'] + body + [
        '.section .rodata,"a"', '.p2align 6', f'.amdhsa_kernel {NAME}_kernel',
        '  .amdhsa_next_free_vgpr 512', '  .amdhsa_next_free_sgpr 102', '  .amdhsa_accum_offset 256',
        '  .amdhsa_group_segment_fixed_size 0', '  .amdhsa_kernarg_size 144', '  .amdhsa_user_sgpr_count 2',
        '  .amdhsa_user_sgpr_kernarg_segment_ptr 1', '  .amdhsa_system_sgpr_workgroup_id_x 1',
        '  .amdhsa_float_denorm_mode_32 3', '.end_amdhsa_kernel', '']
    fn = OPT.get('o', 'cdna_kernels/%s.s' % NAME)
    open(fn, 'w').write('\n'.join(out))
    print('wrote', fn, 'lines', len(out), 'nops added', added)

if __name__ == '__main__':
    main()
```

```python
import re

TRANS = ("v_exp_f32","v_log_f32","v_rcp_f32","v_rsq_f32","v_sqrt_f32","v_sin_f32","v_cos_f32","v_rcp_iflag_f32")

def regs_of(tok):
    tok = tok.strip()
    tok = tok.lstrip('-')
    if tok.startswith('abs(') or tok.startswith('|'):
        tok = tok.replace('abs(','').replace(')','').replace('|','')
    m = re.fullmatch(r'([vas])\[(\d+):(\d+)\]', tok)
    if m:
        return {(m.group(1), i) for i in range(int(m.group(2)), int(m.group(3))+1)}
    m = re.fullmatch(r'([vas])(\d+)', tok)
    if m:
        return {(m.group(1), int(m.group(2)))}
    if tok in ('vcc','vcc_lo','vcc_hi'): return {('x','vcc')}
    if tok in ('exec','exec_lo','exec_hi'): return {('x','exec')}
    if tok == 'm0': return {('x','m0')}
    return set()

class Ins:
    def __init__(self, text):
        self.text = text
        t = text.split(';')[0].strip()
        self.label = t.endswith(':')
        self.dir = t.startswith('.') and not self.label
        self.op = t.split()[0] if t else ''
        rest = t[len(self.op):].strip()
        ops = []; cur = ''; depth = 0
        for ch in rest:
            if ch in '[(': depth += 1
            if ch in '])': depth -= 1
            if ch == ',' and depth == 0:
                ops.append(cur.strip()); cur = ''
            else:
                cur += ch
        if cur.strip(): ops.append(cur.strip())
        self.mods = ''
        if ops:
            parts = ops[-1].split()
            ops[-1] = parts[0] if parts else ''
            self.mods = ' '.join(parts[1:])
        self.ops = ops
        self.classify()

    def classify(self):
        op = self.op; ops = self.ops
        self.kind = 'other'; self.w = set(); self.r = set()
        self.srcC = set(); self.srcAB = set(); self.passes = 0; self.sdata = set()
        R = [regs_of(o) for o in ops]
        if self.label or self.dir or not op:
            self.kind = 'none'; return
        if op.startswith('v_mfma'):
            self.kind = 'mfma'; self.w = R[0]; self.srcAB = R[1] | R[2]; self.srcC = R[3]; self.r = self.srcAB | self.srcC
            self.passes = 8 if '32x32x16' in op else 4
        elif op.startswith('v_'):
            self.kind = 'valu'
            self.w = set(R[0])
            srcs = R[1:]
            if op.startswith(('v_add_co','v_sub_co','v_subrev_co','v_addc_co','v_subb_co','v_div_scale','v_mad_u64')):
                self.w |= R[1]; srcs = R[2:]
            for s in srcs: self.r |= s
            if op.startswith(('v_fmac','v_pk_fmac','v_dot2c')) : self.r |= R[0]
            if op.startswith('v_permlane') : self.r |= R[0]; self.w |= R[1]
            if op.startswith('v_cmpx'): self.w |= {('x','exec')}
            if op.startswith('v_writelane'): self.r |= R[0]
        elif op.startswith('ds_'):
            self.kind = 'ds'
            if op.startswith(('ds_read','ds_bpermute','ds_permute','ds_swizzle')):
                self.w = R[0]
                for s in R[1:]: self.r |= s
            else:
                for s in R: self.r |= s
        elif op.startswith(('buffer_','global_')):
            self.kind = 'vmem'
            islds = bool(re.search(r'\blds\b', self.mods))
            self.ldsdma = islds
            if op in ('buffer_wbl2','buffer_inv'):
                pass
            elif 'load' in op and not islds:
                self.w = R[0]
                for s in R[1:]: self.r |= s
            else:
                for s in R: self.r |= s
                if islds: self.r |= {('x','m0')}
                if 'store' in op and ('x4' in op or 'x3' in op):
                    self.sdata = R[0] if op.startswith('buffer_') else R[1]
        elif op.startswith('s_'):
            self.kind = 'salu'
            if op.startswith(('s_cmp','s_cbranch','s_branch','s_waitcnt','s_barrier','s_nop','s_endpgm','s_sleep','s_setprio','s_bitcmp')):
                for s in R: self.r |= s
            else:
                if R: self.w = set(R[0])
                for s in R[1:]: self.r |= s
                if 'saveexec' in op: self.w |= {('x','exec')}

    def states(self):
        if self.kind == 'none': return 0
        if self.op == 's_nop': return int(self.ops[0], 0) + 1
        return 1

def isv(s): return {x for x in s if x[0] in 'va'}
def iss(s): return {x for x in s if x[0] == 's' or x == ('x','vcc')}

def need(p, c):
    n = 0
    if p.kind == 'valu':
        wv = isv(p.w); ws = iss(p.w)
        if c.kind == 'mfma' and wv & c.r: n = max(n, 2)
        if c.kind == 'vmem' and ws & c.r: n = max(n, 5)
        if c.kind == 'valu':
            if ws & c.r: n = max(n, 4 if c.op.startswith(('v_readlane','v_writelane')) else 2)
            if c.op.startswith(('v_cndmask','v_addc','v_subb')) and ('x','vcc') in p.w: n = max(n, 2)
            if c.op.startswith('v_div_fmas') and ('x','vcc') in p.w: n = max(n, 4)
            if wv & c.r:
                if c.op.startswith(('v_readfirstlane','v_readlane')): n = max(n, 1)
                if c.op.startswith('v_permlane') or 'dpp' in c.op or 'row_' in c.mods: n = max(n, 2)
                if p.op.replace('_e32','').replace('_e64','') in TRANS: n = max(n, 1)
                if 'sdwa' in p.op or 'op_sel' in p.mods and not p.op.startswith('v_pk_'): n = max(n, 1)
        if c.kind == 'salu' and ws & c.r: n = max(n, 1)
        if ('x','exec') in p.w: n = max(n, 5)
    if p.kind == 'mfma':
        big = 12 if p.passes == 8 else 8
        if c.kind == 'mfma':
            if p.w & c.srcAB: n = max(n, big)
            if p.w & c.srcC and not (p.w == c.srcC and p.passes == c.passes): n = max(n, 10 if p.passes == 8 else 6)
            if p.w & c.w and not (p.w == c.srcC and p.passes == c.passes): n = max(n, big)
        elif c.kind in ('valu','vmem','ds'):
            if p.w & (c.r | c.w): n = max(n, big)
            if c.kind == 'valu' and p.srcC & c.w: n = max(n, 7 if p.passes == 8 else 3)
    if p.kind == 'salu' and ('x','m0') in p.w and c.kind == 'vmem' and getattr(c,'ldsdma',False): n = max(n, 1)
    if p.kind == 'vmem' and p.sdata and p.sdata & c.w:
        n = max(n, 2 if c.kind in ('valu','mfma') else 1)
    return n

def fix_hazards(lines):
    W = 24
    inss = [Ins(ln) for ln in lines]
    def target(i):
        return i.ops[0] if i.op.startswith(('s_cbranch', 's_branch')) else None
    back = {}
    for it in range(3):
        out = []; added = 0
        hists = [[]]; fwd = {}; seen = set(); nback = {}
        for ln, ins in zip(lines, inss):
            if ins.label:
                name = ln.strip()[:-1]; seen.add(name)
                hists = hists + fwd.pop(name, []) + back.get(name, [])
                uniq = []
                for h in hists:
                    if not any(len(h) == len(u) and all(a is b for a, b in zip(h, u)) for u in uniq): uniq.append(h)
                hists = uniq or [[]]
            elif ins.kind != 'none':
                req = 0
                for h in hists:
                    dist = 0
                    for p in reversed(h):
                        req = max(req, need(p, ins) - dist)
                        dist += p.states()
                        if dist > 20: break
                while req > 0:
                    k = min(req, 16)
                    nop = Ins('s_nop %d' % (k-1)); out.append('    s_nop %d ; hz' % (k-1)); req -= k; added += 1
                    hists = [h + [nop] for h in hists]
                hists = [(h + [ins])[-W:] for h in hists]
                uniq = []
                for h in hists:
                    if not any(len(h) == len(u) and all(a is b for a, b in zip(h, u)) for u in uniq): uniq.append(h)
                hists = uniq
                t = target(ins)
                if t:
                    (nback if t in seen else fwd).setdefault(t, []).extend([list(h) for h in hists])
                if ins.op in ('s_branch', 's_endpgm'): hists = []
            out.append(ln)
        back = nback
    return out, added

class G:
    def __init__(self):
        self.lines = []
        self.vm = []
        self.nlab = 0
    def e(self, s, tag=None):
        for ln in s.strip().split('\n'):
            ln = ln.strip()
            if not ln: continue
            self.lines.append(('' if ln.endswith(':') else '    ') + ln)
            op = ln.split()[0]
            if op.startswith(('buffer_','global_')) and op not in ('buffer_wbl2','buffer_inv'):
                self.vm.append(tag)
    def c(self, s): self.lines.append('    ; ' + s)
    def label(self, name): self.lines.append(name + ':')
    def newlabel(self, p='L'):
        self.nlab += 1; return '%s_%d' % (p, self.nlab)
    def vmN(self, tag):
        idx = [i for i, t in enumerate(self.vm) if t == tag]
        if not idx: return None
        return len(self.vm) - 1 - idx[-1]
    def wait_vm(self, tag, extra=''):
        n = self.vmN(tag)
        if n is None:
            if extra: self.e('s_waitcnt ' + extra)
            return
        assert n <= 63, n
        self.e('s_waitcnt vmcnt(%d) %s' % (n, extra))
        self.vm = self.vm[len(self.vm)-n:] if n else []
    def wait_vm0(self, extra=''):
        self.e('s_waitcnt vmcnt(0) %s' % extra); self.vm = []
```

```python
from asmlib import G

def help2(g, M):
    P, sW, sXCD, sIDX, opt = M.P, M.sW, M.sXCD, M.sIDX, M.opt
    H2 = opt('help2', 0)
    if H2:
        CPI = opt('cpi', 2)
        Lh = g.newlabel('Lhelp2')
        g.e(f'''
        s_sub_u32 s12, s{sIDX}, 20
        s_mul_i32 s13, s{sW}, 10
        s_add_u32 s12, s12, s13
        s_cmp_ge_u32 s12, 72
        s_cbranch_scc1 {Lh}
        v_and_b32 v253, 15, v0
        v_mul_u32_u24 v253, 1280, v253
        v_lshrrev_b32 v254, 4, v0
        v_lshl_add_u32 v253, v254, 7, v253
        s_and_b32 s13, s{sXCD}, 1
        s_mul_i32 s13, s13, 20
        s_add_u32 s13, s13, s12
        s_sub_u32 s13, s13, 32
        s_sub_u32 s14, s13, 20
        s_lshr_b32 s15, s{sXCD}, 1
        s_lshl_b32 s15, s15, 5
        s_add_u32 s15, s15, s12
        s_mov_b32 s62, 819200
        s_mov_b32 s63, 0x20000
        s_mov_b64 exec, {(1 << (16*CPI)) - 1 if CPI < 4 else -1}
        s_waitcnt lgkmcnt(0)
        s_cmp_ge_u32 s12, 52
        s_cselect_b32 s60, s{P['Bim']}, s{P['Bre']}
        s_cselect_b32 s61, s{P['Bim']+1}, s{P['Bre']+1}
        s_cselect_b32 s13, s14, s13
        s_cmp_lt_u32 s12, 32
        s_cselect_b32 s60, s{P['x']}, s60
        s_cselect_b32 s61, s{P['x']+1}, s61
        s_cselect_b32 s62, 2621440, s62
        s_cselect_b32 s13, s15, s13
        s_mul_i32 s13, s13, {16*1280}
        ''')
        for c0 in range(H2, 10, CPI):
            g.lines.append(f'    buffer_load_dword v254, v253, s[60:63], s13 offen offset:{128*c0}')
        g.e('s_mov_b64 exec, -1')
        g.label(Lh)

def role_A(g, M):
    P, sp, srd, vr, mk_srd, stamp, diag_out, get_tag = M.P, M.sp, M.srd, M.vr, M.mk_srd, M.stamp, M.diag_out, M.get_tag
    sW, sXCD, sIDX = M.sW, M.sXCD, M.sIDX
    SRD_WS, SRD_OUT, SRD_DBG = M.SRD_WS, M.SRD_OUT, M.SRD_DBG
    OPT, DIAG, MF, opt = M.OPT, M.DIAG, M.MF, M.opt
    SRD_K, SRD_V, SRD_SK, SRD_Q = 52, 56, 60, 64
    sA, sTT, sCG, sCH = 6, 7, 8, 9
    sKC, sU, sD, sMK = 10, 11, 80, 82
    CPS = 4160; RS = 20480; UO = 16368; TO = 16384
    TAG, ZERO = 10, 11
    NTK = ' nt' if 'k' in OPT.get('nt', '') else ''
    NTS = ' nt' if 's' in OPT.get('nt', '') else ''
    NTQ = ' nt' if 'q' in OPT.get('nt', '') else ''
    g.c('==== role A ====')
    H2 = opt('help2', 0)
    if not opt('hfront', 0): help2(g, M)
    g.e(f'''
    s_mul_i32 s{sA}, s{sXCD}, 10
    s_add_u32 s{sA}, s{sA}, s{sIDX}
    s_sub_u32 s{sA}, s{sA}, 20
    s_and_b32 s{sTT}, s{sA}, 7
    s_lshr_b32 s{sCG}, s{sA}, 3
    s_lshl_b32 s{sCH}, s{sA}, 3
    s_add_u32 s{sCH}, s{sCH}, s{sW}
    s_mul_i32 s{sKC}, s{sW}, {RS}
    s_add_u32 s{sU}, s{sKC}, {UO}
    s_mov_b32 s{sMK}, 0xffff0000
    ''')
    g.e(f'''
    v_and_b32 v1, 15, v0
    v_lshrrev_b32 v2, 4, v0
    s_lshl_b32 s13, s{sW}, 2
    v_add_u32 v9, s13, v2
    s_lshl_b32 s13, s{sTT}, 8
    s_lshl_b32 s14, s{sW}, 5
    s_add_u32 s13, s13, s14
    v_lshrrev_b32 v3, 3, v0
    v_add_u32 v3, s13, v3
    v_mul_u32_u24 v3, 1280, v3
    v_and_b32 v4, 7, v0
    v_lshl_add_u32 v3, v4, 4, v3
    s_lshl_b32 s13, s{sCG}, 7
    v_add_u32 v3, s13, v3
    v_subrev_u32 v4, {8*1280}, v3
    s_lshl_b32 s13, s{sCG}, 9
    v_lshl_add_u32 v5, v1, 5, s13
    v_mov_b32 v{ZERO}, 0
    v_lshlrev_b32 v6, 4, v0
    s_waitcnt lgkmcnt(0)
    ''')
    stamp(g, 0)
    HELP = opt('help', 0)
    if HELP:
        ntot = 18 * (10 - HELP)
        g.e(f's_sub_u32 s12, s{sIDX}, 20\ns_lshl_b32 s12, s12, 3\ns_add_u32 s12, s12, s{sW}\nv_mul_u32_u24 v253, 1280, v0\ns_mov_b32 s63, 0x20000')
        for rep in range((ntot + 79) // 80):
            Lh = g.newlabel('Lhelp')
            if rep: g.e('s_add_u32 s12, s12, 80')
            if 80*(rep+1) > ntot: g.e(f's_cmp_ge_u32 s12, {ntot}\ns_cbranch_scc1 {Lh}')
            g.e(f'''
            s_mul_i32 s13, s12, 3641
            s_lshr_b32 s13, s13, 16
            s_mul_i32 s14, s13, 18
            s_sub_u32 s14, s12, s14
            s_cmp_ge_u32 s14, 13
            s_cselect_b32 s60, s{P['Bim']}, s{P['Bre']}
            s_cselect_b32 s61, s{P['Bim']+1}, s{P['Bre']+1}
            s_cselect_b32 s15, 13, 8
            s_sub_u32 s15, s14, s15
            s_and_b32 s64, s{sXCD}, 1
            s_mul_i32 s64, s64, 5
            s_add_u32 s15, s15, s64
            s_lshr_b32 s64, s{sXCD}, 1
            s_lshl_b32 s64, s64, 3
            s_add_u32 s64, s64, s14
            s_mov_b32 s62, 819200
            s_cmp_lt_u32 s14, 8
            s_cselect_b32 s60, s{P['x']}, s60
            s_cselect_b32 s61, s{P['x']+1}, s61
            s_cselect_b32 s62, 2621440, s62
            s_cselect_b32 s15, s64, s15
            s_mul_i32 s15, s15, {64*1280}
            s_lshl_b32 s13, s13, 7
            s_add_u32 s15, s15, s13
            ''')
            g.lines.append(f'    buffer_load_dword v254, v253, s[60:63], s15 offen offset:{128*HELP}')
            g.label(Lh)
        if opt('hbar', 1): g.e('s_barrier')
    if H2 and opt('hbar', 1): g.e('s_barrier')
    mk_srd(g, SRD_K, 'k', 2621440)
    mk_srd(g, SRD_V, 'v', 2621440)
    KR, VR, WR = 16, 38, 54
    for i in range(2): g.e(f'global_load_dwordx4 {vr(WR+4*i,4)}, v5, {sp("shk")} offset:{16*i}', tag='w')
    SENT = opt('sent', 1)
    SO = 4160
    KWK = opt('kwk', 0)
    def kvdma(v3, v4):
        g.e(f's_add_u32 m0, s{sKC}, {SO}\ns_mov_b32 exec_lo, 0\ns_mov_b32 exec_hi, 0xffffff00')
        g.e(f'buffer_load_dwordx4 v{v4}, {srd(SRD_K)}, 0 offen lds', tag='kk')
        g.e(f's_mov_b64 exec, -1\ns_add_u32 m0, s{sKC}, {SO+1024}\ns_mov_b32 s13, 0')
        for i in range(4):
            g.e(f'buffer_load_dwordx4 v{v3}, {srd(SRD_K)}, s13 offen offset:{1024*i}{NTK} lds', tag='kk')
            if i < 3: g.e(f's_add_u32 s13, s13, {8*1280-1024}')
        if opt('kvb', 0): g.e('s_barrier')
        g.e(f's_add_u32 m0, s{sKC}, {SO+5120}\ns_mov_b32 s13, 0')
        for i in range(4):
            g.e(f'buffer_load_dwordx4 v{v3}, {srd(SRD_V)}, s13 offen offset:{1024*i}{NTK} lds', tag='kv')
            if i < 3: g.e(f's_add_u32 s13, s13, {8*1280-1024}')
    if SENT != 2: kvdma(3, 4)
    else: g.e('v_mov_b32 v251, v3\nv_mov_b32 v252, v4')
    g.e(f'v_lshlrev_b32 v3, 10, v2\nv_lshl_add_u32 v3, v1, 3, v3\nv_add_u32 v3, s{sKC}, v3')
    mk_srd(g, SRD_SK, 'ssmk', 2621440)
    mk_srd(g, SRD_Q, 'q', 2621440)
    mk_srd(g, SRD_WS, 'ws', 0x10000000)
    mk_srd(g, SRD_OUT, 'out', 10485760)
    mk_srd(g, SRD_DBG, 'dbg', 256)
    if opt('tlb', 0):
        Lt = g.newlabel('Ltlb')
        g.e(f's_cmp_lg_u32 s{sW}, 7\ns_cbranch_scc1 {Lt}\nv_lshlrev_b32 v253, 18, v0\nv_lshlrev_b32 v254, 16, v0')
        g.lines.append(f'    buffer_load_dword v255, v253, {srd(SRD_WS)}, 0 offen')
        g.lines.append(f'    buffer_load_dword v255, v253, {srd(SRD_OUT)}, 0 offen')
        g.lines.append(f'    buffer_load_dword v255, v254, {srd(SRD_Q)}, 0 offen')
        g.lines.append(f'    buffer_load_dword v255, v254, {srd(SRD_SK)}, 0 offen')
        g.label(Lt)
    g.e(f'''
    s_lshl_b32 s13, s{sCH}, 1
    s_and_b32 s13, s13, 0xfffffffc
    s_add_u32 s14, s{P['ssmD']}, s13
    s_addc_u32 s15, s{P['ssmD']+1}, 0
    s_load_dword s{sD}, s[14:15], 0
    v_mov_b32 v12, 0
    v_mov_b32 v13, 0
    v_mov_b32 v14, 0
    v_mov_b32 v15, 0
    v_sub_u32 v8, 31, v9
    v_and_b32 v7, 7, v1
    v_xor_b32 v8, v8, v7
    v_lshlrev_b32 v8, 4, v8
    v_and_b32 v7, 1, v1
    v_lshl_add_u32 v8, v7, 11, v8
    v_lshrrev_b32 v7, 1, v1
    v_mul_u32_u24 v7, {RS}, v7
    v_add_u32 v8, v8, v7
    v_lshrrev_b32 v7, 5, v0
    v_and_b32 v9, 31, v0
    s_lshl_b32 s14, s{sW}, 1
    s_and_b32 s14, s14, 7
    v_xor_b32 v248, s14, v9
    v_lshlrev_b32 v248, 4, v248
    v_lshl_add_u32 v248, v7, 9, v248
    v_add_u32 v248, s{sKC}, v248
    v_xor_b32 v249, 16, v248
    v_lshlrev_b32 v250, 12, v7
    v_lshl_add_u32 v250, v9, 4, v250
    s_lshl_b32 s83, s{sCG}, 6
    s_lshl_b32 s14, s{sW}, 3
    s_add_u32 s83, s83, s14
    s_lshl_b32 s83, s83, 12
    s_sub_u32 s14, 7, s{sTT}
    s_lshl_b32 s14, s14, 9
    s_add_u32 s83, s83, s14
    s_lshl_b32 s81, s{sCG}, 3
    s_add_u32 s81, s81, s{sW}
    s_lshl_b32 s81, s81, 5
    s_add_u32 s81, s81, s{sTT}
    s_lshl_b32 s81, s81, 2
    s_add_u32 s81, s81, {M.FU_OFF:#x}
    s_waitcnt lgkmcnt(0)
    s_bitcmp1_b32 s{sCH}, 0
    s_cselect_b32 s13, 0, 16
    s_lshl_b32 s{sD}, s{sD}, s13
    s_and_b32 s{sD}, s{sD}, 0xffff0000
    ''')
    for r in range(4): g.e(f'v_mov_b32 v{224+r}, -1')
    def clears():
        g.e('s_mov_b32 s13, s83')
        for i in range(4):
            g.e(f'buffer_store_dwordx4 v[224:227], v250, {srd(SRD_WS)}, s13 offen sc1', tag='clr')
            if i < 3: g.e('s_add_u32 s13, s13, 8192')
    def flag():
        get_tag(g, TAG, ZERO)
        g.e(f's_mov_b64 exec, 1\nbuffer_store_dword v{TAG}, v{ZERO}, {srd(SRD_WS)}, s81 offen sc1\ns_mov_b64 exec, -1')
    if SENT == 2: clears()
    if opt('ktch', 0):
        g.e(f's_lshl_b32 s13, s{sCH}, 12\nv_lshlrev_b32 v228, 6, v0')
        g.e(f'buffer_load_dword v229, v228, {srd(SRD_SK)}, s13 offen', tag='kt')
    VT, VP, VK, VZ, VQ, VO, VZR, VQT = 240, 241, 242, 243, 244, 245, 246, 247
    VP0 = 232
    g.e(f'''
    v_lshrrev_b32 v4, 1, v0
    s_lshl_b32 s13, s{sW}, 5
    v_add_u32 v4, s13, v4
    v_and_b32 v5, 1, v0
    v_mul_u32_u24 v{VQ}, 5120, v4
    v_lshl_add_u32 v{VQ}, v5, 3, v{VQ}
    s_lshl_b32 s13, s{sA}, 4
    v_add_u32 v{VQ}, s13, v{VQ}
    v_mul_u32_u24 v{VO}, 20480, v4
    v_lshl_add_u32 v{VO}, v5, 4, v{VO}
    v_mul_u32_u24 v7, {4*RS+128}, v5
    v_lshl_add_u32 v{VZR}, v4, 4, v7
    s_sub_u32 s13, s{sIDX}, 20
    s_mul_i32 s13, s13, 205
    v_add_u32 v4, s13, v4
    v_mul_u32_u24 v4, 1280, v4
    v_mul_u32_u24 v5, 156, v5
    s_mul_i32 s13, s{sXCD}, 160
    v_add3_u32 v{VQT}, v4, v5, s13
    v_add_u32 v4, 1, v1
    v_and_b32 v5, 1, v4
    v_bfe_u32 v7, v4, 1, 1
    v_lshl_add_u32 v5, v5, 1, v7
    v_mul_u32_u24 v5, {CPS}, v5
    v_and_b32 v4, 28, v4
    v_lshl_add_u32 v5, v4, 1, v5
    v_lshl_add_u32 v5, v2, 4, v5
    v_add_u32 v{VT}, s{sKC}, v5
    v_lshlrev_b32 v4, 5, v1
    v_sub_u32 v4, 480, v4
    v_lshl_add_u32 v5, v2, 4, v4
    v_add_u32 v{VP}, s{sU}, v5
    v_lshlrev_b32 v5, 3, v2
    v_sub_u32 v5, v4, v5
    v_add_u32 v5, 24, v5
    v_add_u32 v{VK}, s{sU}, v5
    v_lshlrev_b32 v4, 6, v1
    v_lshl_add_u32 v4, v2, 4, v4
    s_lshr_b32 s13, s{sW}, 2
    s_lshl_b32 s13, s13, 7
    s_add_u32 s13, s13, s{sKC}
    v_add_u32 v{VZ}, s13, v4
    s_add_u32 s13, s{sU}, 4096
    ''')
    AD = 228
    g.e(f'''
    v_lshl_add_u32 v4, v2, 3, v1
    v_sub_u32 v4, 15, v4
    s_lshr_b32 s14, s{sD}, 16
    v_mov_b32 v5, s14
    v_and_b32 v7, 1, v4
    v_lshlrev_b32 v7, 4, v7
    v_lshlrev_b32 v5, v7, v5
    v_ashrrev_i32 v4, 1, v4
    ''')
    for r in range(4): g.e(f'v_cmp_eq_u32 vcc, {r}, v4\nv_cndmask_b32 v{AD+r}, 0, v5, vcc')
    for rho in range(8): g.e(f'v_add_u32 v{VP0+rho}, {64*(56+rho)}, v{VP}\nv_min_u32 v{VP0+rho}, s13, v{VP0+rho}')
    WF = 62; KD = 200
    g.e(f's_lshl_b32 s12, s{sCH}, 12')
    g.wait_vm('w')
    KPOS = opt('kpos', 1)
    for ch in range(4):
        for tap in range(4):
            src = WR + 2*ch + (tap >> 1)
            g.e(f'v_and_b32 v{WF+tap*4+ch}, s{sMK}, v{src}' if tap & 1 else f'v_lshlrev_b32 v{WF+tap*4+ch}, 16, v{src}')
    if SENT == 2:
        g.wait_vm('clr')
        if opt('s2t', 0):
            g.e(f'buffer_load_dword v{TAG}, v{ZERO}, {srd(SRD_DBG)}, 0 offen sc1', tag='tag')
            g.wait_vm('tag'); flag(); kvdma(251, 252)
        else:
            kvdma(251, 252)
            g.e(f'buffer_load_dword v{TAG}, v{ZERO}, {srd(SRD_DBG)}, 0 offen sc1', tag='kv')
    assert SENT == 2 and opt('s2t', 0)
    K2E = 0; ATCH = 0
    KF, VF, SF, OP = 78, 100, 116, 148
    kq = [f'buffer_load_dwordx4 v6, {srd(SRD_SK)}, s12 offen offset:{1024*i}{NTS} lds' for i in range(4)]
    g.e(f's_add_u32 m0, s{sKC}, 32')
    g.wait_vm('kk')
    for r in range(11): g.e(f'ds_read_b64 {vr(KR+2*r,2)}, v3 offset:{SO+(5+r)*128}')
    g.e('s_waitcnt lgkmcnt(0)')
    for cp in range(2):
        for r in range(11):
            g.e(f'v_lshlrev_b32 v{KF+2*r}, 16, v{KR+2*r+cp}\nv_and_b32 v{KF+2*r+1}, s{sMK}, v{KR+2*r+cp}')
        if KWK: g.e(kq.pop(0), tag='K0')
        for tap in (3, 2, 1, 0):
            for r in range(8):
                kk = vr(KF + 2*(r + 3 - tap), 2); w = vr(WF + tap*4 + 2*cp, 2); s = vr(SF + 16*cp + 2*r, 2)
                g.e(f'v_pk_mul_f32 {s}, {kk}, {w}' if tap == 3 else f'v_pk_fma_f32 {s}, {kk}, {w}, {s}')
            if tap == 2 and KWK: g.e(kq.pop(0), tag='K0')
    g.wait_vm('kv')
    stamp(g, 1)
    for r in range(8): g.e(f'ds_read_b64 {vr(VR+2*r,2)}, v3 offset:{SO+5120+r*128}')
    for x in kq: g.e(x, tag='K0')
    g.e('s_waitcnt lgkmcnt(0)')
    for cp in range(2):
        for r in range(8):
            g.e(f'v_lshlrev_b32 v{VF+2*r}, 16, v{VR+2*r+cp}\nv_and_b32 v{VF+2*r+1}, s{sMK}, v{VR+2*r+cp}')
        sf = SF + 16*cp
        for r in range(8): g.e(f'v_pk_mul_f32 {vr(sf+2*r,2)}, {vr(sf+2*r,2)}, {vr(VF+2*r,2)}')
        o = OP + 8*cp
        for hh in range(2):
            for d in range(4):
                g.e(f'v_cvt_pk_bf16_f32 v{o+4*hh+d}, v{sf+2*(7-2*d)+hh}, v{sf+2*(6-2*d)+hh}')
            g.e(f'ds_write_b128 v8, {vr(o+4*hh,4)} offset:{TO+(2*cp+hh)*512}')
    g.wait_vm('tag')
    if SENT == 1: flag()
    if ATCH == 2: ctouch()
    VKC = 7
    T7 = 168
    O0, O2, O1, O3 = 0, CPS, 2*CPS, 3*CPS
    assert SENT and opt('k2w', 0) and not K2E
    def kbuild():
        for i in range(4):
            g.e(f'ds_read_b128 {vr(KD+6*i,4)}, v{VKC} offset:{32+1024*i}\nds_read_b64 {vr(KD+6*i+4,2)}, v{VKC} offset:{48+1024*i}')
        for i in range(4):
            d = KD + 6*i; o = 32 + 1024*i; t = 48 + 8*i
            g.e(f's_waitcnt lgkmcnt(6)')
            for j in range(4): g.e(f'v_mov_b32 v{100+4*i+j}, v{d+1+j}')
            g.e(f'ds_write_b128 v{VKC}, {vr(100+4*i,4)} offset:{O2+o}')
            for j in range(4): g.e(f'v_alignbit_b32 v{t+j}, v{d+1+j}, v{d+j}, 16')
            for j in range(3): g.e(f'v_mov_b32 v{t+4+j}, v{t+1+j}')
            g.e(f'v_alignbit_b32 v{t+7}, v{d+5}, v{d+4}, 16')
            g.e(f'ds_write_b128 v{VKC}, {vr(t,4)} offset:{O1+o}')
            if i < 3: g.e(f'ds_write_b128 v{VKC}, {vr(t+4,4)} offset:{O3+o}')
        g.e(f"""
        s_mov_b64 exec, 3
        v_lshlrev_b32 v96, 16, v{KD}
        ds_write_b128 v{VKC}, v[12:15]
        ds_write_b128 v{VKC}, v[12:15] offset:{CPS}
        ds_write_b128 v{VKC}, v[12:15] offset:{2*CPS}
        ds_write_b128 v{VKC}, v[12:15] offset:{3*CPS}
        s_mov_b64 exec, 1
        ds_write_b32 v{VKC}, v96 offset:{O1+28}
        ds_write_b32 v{VKC}, v{KD} offset:{O2+28}
        ds_write_b32 v{VKC}, v96 offset:{O3+24}
        ds_write_b32 v{VKC}, v48 offset:{O3+28}
        s_mov_b64 exec, -1
        """)
    NEB = opt('neb', 0)
    g.e(f"""
    v_add_u32 v{VKC}, s{sKC}, v6
    v_and_b32 v3, 7, v0
    v_lshlrev_b32 v3, 2, v3
    s_lshl_b32 s13, s{sA}, 7
    s_add_u32 s13, s13, {M.FU_OFF:#x}
    """)
    Lb1, Lb2 = g.newlabel('Lkb'), g.newlabel('Lkb')
    if NEB:
        keep = list(g.vm)
        g.e(f's_cmp_ge_u32 s{sW}, {NEB}\ns_cbranch_scc1 {Lb1}')
        g.wait_vm('K0')
        kbuild()
        g.label(Lb1)
        g.vm = keep
    g.e('s_waitcnt lgkmcnt(0)\ns_barrier')
    RB = 16
    for i in range(4): g.e(f'ds_read_b128 {vr(RB+4*i,4)}, v{248 + (i >> 1)} offset:{TO+1024*i}')
    for i in range(4):
        g.e(f's_waitcnt lgkmcnt({3-i})')
        g.e(f'buffer_store_dwordx4 {vr(RB+4*i,4)}, v250, {srd(SRD_WS)}, s83 offen sc1', tag='us')
        if i < 3: g.e('s_add_u32 s83, s83, 8192')
    g.e(f'buffer_load_dword v4, v3, {srd(SRD_WS)}, s13 offen sc1', tag='fl')
    stamp(g, 2)
    if NEB: g.e(f's_cmp_lt_u32 s{sW}, {NEB}\ns_cbranch_scc1 {Lb2}')
    if opt('bpr', 0):
        Lx = g.newlabel('Lbpr')
        g.e(f's_cmp_ge_u32 s{sW}, 4\ns_cbranch_scc1 {Lx}\ns_setprio 2')
        g.label(Lx)
    if opt('p3', 0): g.e('s_setprio 3')
    if opt('ldl', 0):
        Lx = g.newlabel('Lldl')
        g.e(f's_cmp_lt_u32 s{sW}, 4\ns_cbranch_scc1 {Lx}\ns_waitcnt vmcnt(0)')
        g.label(Lx)
    g.wait_vm('K0')
    kbuild()
    g.label(Lb2)
    g.e(f'ds_write_b128 v{VKC}, {vr(48+24+4,4)} offset:{O3+32+3072}\ns_mov_b64 exec, 1\nds_write_b128 v{VKC}, v[12:15] offset:{UO+4096}\ns_mov_b64 exec, -1')
    for rho in range(8):
        g.e(f'ds_read_b64 {vr(T7+4*rho,2)}, v{VT} offset:{64*(56+rho)}\nds_read_b64 {vr(T7+4*rho+2,2)}, v{VT} offset:{64*(56+rho)+8}')
    stamp(g, 3)
    Lp, Ld = g.newlabel('Lupoll'), g.newlabel('Ludone')
    g.e(f's_mov_b32 s15, {M.SPIN_MAX}\ns_mov_b32 m0, s{sU}\nv_add_u32 v5, s{sU}, v6')
    g.label(Lp)
    g.wait_vm0()
    g.e(f'v_cmp_ne_u32 vcc, v4, v{TAG}\ns_cbranch_vccz {Ld}')
    g.e(f'buffer_load_dword v4, v3, {srd(SRD_WS)}, s13 offen sc1')
    g.e(f's_sub_u32 s15, s15, 1\ns_cmp_lg_u32 s15, 0\ns_cbranch_scc1 {Lp}')
    g.label(Ld)
    g.e(f's_waitcnt lgkmcnt(0)\ns_mov_b32 s15, {M.SPIN_MAX}')
    stamp(g, 4)
    ACC = 16; FR = [48, 108]; QR = 200
    def rdT(rho, fb): return [f'ds_read_b64 {vr(fb+4*i+2*h,2)}, v{VT} offset:{64*(8*i+rho)+8*h}' for i in range(7) for h in range(2)]
    def rdP(rho, fb): return [f'ds_read_b128 {vr(fb+28+4*j,4)}, ' + (f'v{VP} offset:{64*(56-8*j+rho)}' if j else f'v{VP0+rho}') for j in range(8)]
    def reads(rho, fb):
        t, p = rdT(rho, fb), rdP(rho, fb)
        return t[:2] + p + t[2:]
    def mfmas(rho, fb):
        out = []
        for i in range(8):
            for j in range(8 - i):
                T = i + j
                a_ = vr(fb+4*i, 4) if i < 7 else vr(T7+4*rho, 4)
                out.append(f'{MF} {vr(ACC+4*T,4)}, {a_}, {vr(fb+28+4*j,4)}, {"0" if rho == 0 and i == 0 else vr(ACC+4*T,4)}')
        return out
    for r in rdT(0, FR[0]): g.e(r)
    g.e(f's_mov_b32 s14, {1024*1280}')
    Lu, Lud = g.newlabel('Luget'), g.newlabel('Lugot')
    if SENT and opt('upr', 0):
        Lq, Lqd = g.newlabel('Lupr'), g.newlabel('Luprd')
        g.e(f'v_lshlrev_b32 v3, 7, v3')
        g.label(Lq)
        g.e(f'buffer_load_dword v4, v3, {srd(SRD_WS)}, s12 offen offset:496 sc1')
        g.wait_vm0()
        g.e(f'v_cmp_eq_u32 vcc, -1, v4\ns_cbranch_vccz {Lqd}\ns_sub_u32 s15, s15, 1\ns_cmp_lg_u32 s15, 0\ns_cbranch_scc1 {Lq}')
        g.label(Lqd)
        g.e(f's_mov_b32 s15, {M.SPIN_MAX}')
    g.label(Lu)
    for i in range(4): g.e(f'buffer_load_dwordx4 v6, {srd(SRD_WS)}, s12 offen offset:{1024*i} sc1 lds')
    g.wait_vm0()
    if not SENT: g.e(f's_branch {Lud}')
    for i in range(4): g.e(f'ds_read_b128 {vr(16+4*i,4)}, v5 offset:{1024*i}')
    g.e('s_waitcnt lgkmcnt(0)')
    for i in range(5): g.e(f'v_max3_u32 v{16+i}, v{16+3*i}, v{17+3*i}, v{18+3*i}')
    g.e('v_max3_u32 v16, v16, v17, v18\nv_max3_u32 v19, v19, v20, v31\nv_max_u32 v16, v16, v19')
    g.e(f'v_cmp_eq_u32 vcc, -1, v16\ns_cbranch_vccz {Lud}\ns_sub_u32 s15, s15, 1\ns_cmp_lg_u32 s15, 0\ns_cbranch_scc1 {Lu}')
    g.label(Lud)
    stamp(g, 5)
    TS = opt('ts', 4)
    FLG = 7*RS + 12448
    osc = ' ' + OPT.get('afl', '').replace('_', ' ')
    def conv_pass(pairs, first_loaded, hooks, dts, zva, seen0=()):
        I = sorted({i for i, _ in pairs if i < 7}); J = sorted({j for _, j in pairs})
        def rT(rho, fb): return [x for k, x in enumerate(rdT(rho, fb)) if k // 2 in I]
        def rP(rho, fb): return [x for k, x in enumerate(rdP(rho, fb)) if k in J]
        if not first_loaded:
            for r in rT(0, FR[0]): g.e(r)
        for r in rP(0, FR[0]): g.e(r)
        seen = set(seen0)
        for rho in range(8):
            g.e('s_waitcnt lgkmcnt(0)')
            fb = FR[rho & 1]
            rd = []
            if rho < 7:
                t, p = rT(rho+1, FR[(rho+1) & 1]), rP(rho+1, FR[(rho+1) & 1]); rd = t[:2] + p + t[2:]
            pl = list(pairs) + ([('D', T) for T in dts] if rho == 0 else [])
            if rho == 7: pl.sort(key=lambda p_: (sum(p_) not in dts, sum(p_)))
            nm = len(pl); k = 0; pend = []
            for n, (i, j) in enumerate(pl):
                T = j if i == 'D' else i + j
                a_ = vr(AD, 4) if i == 'D' else (vr(fb+4*i, 4) if i < 7 else vr(T7+4*rho, 4))
                g.e(f'{MF} {vr(ACC+4*T,4)}, {a_}, {vr(fb+28+4*j,4)}, {vr(ACC+4*T,4) if T in seen else "0"}')
                seen.add(T)
                tgt = min(len(rd), -(-len(rd) * (n + 1) // max(1, nm - 3)))
                while k < tgt: g.e(rd[k]); k += 1
                for x, tag in hooks.get((rho, n), []): g.e(x, tag=tag)
                if rho == 7 and zva is not None:
                    if T in dts and all(sum(p_) != T for p_ in pl[n+1:]): pend.append((n + 8, T))
                    while pend and pend[0][0] <= n: g.e(zw(pend.pop(0)[1], zva))
            for _, T in pend: g.e(zw(T, zva))
            assert k == len(rd)
    def zw(T, va): return f'ds_write_b128 v{va}, {vr(ACC+4*T,4)} offset:{1024*T}'
    def setflag():
        g.e(f's_lshl_b32 s13, s{sW}, 2\ns_add_u32 s13, s13, {FLG}\nv_mov_b32 v5, s13\ns_mov_b64 exec, 1\nds_write_b32 v5, v{TAG}\ns_mov_b64 exec, -1')
    def waitflags(vaddr):
        L, D = g.newlabel('Lfw'), g.newlabel('Lfwd')
        g.e(f's_mov_b32 s15, {M.SPIN_MAX*16}')
        g.label(L)
        g.e(f'ds_read_b32 v3, v{vaddr}\ns_waitcnt lgkmcnt(0)\nv_cmp_ne_u32 vcc, v3, v{TAG}\ns_cbranch_vccz {D}\ns_sleep 2\ns_sub_u32 s15, s15, 1\ns_cmp_lg_u32 s15, 0\ns_cbranch_scc1 {L}')
        g.label(D)
    def qunpack(q, t, n):
        for k in range(n):
            g.e(f'v_lshlrev_b32 v{t+4*k}, 16, v{q+2*k}\nv_and_b32 v{t+4*k+1}, s{sMK}, v{q+2*k}\nv_lshlrev_b32 v{t+4*k+2}, 16, v{q+2*k+1}\nv_and_b32 v{t+4*k+3}, s{sMK}, v{q+2*k+1}')
    def final(units, va, vb):
        for n, (zo, ro, qf) in enumerate(units):
            for e in range(4): g.e(f'ds_read_b128 {vr(72+16*n+4*e,4)}, v{va if e < 2 else vb} offset:{(e&1)*RS + zo}')
        for n, (zo, ro, qf) in enumerate(units):
            g.e(f's_lshl_b32 s13, s{sA}, 5\ns_add_u32 s13, s13, {ro*5120}\ns_waitcnt lgkmcnt({4*(len(units)-1-n)})')
            for r in range(4):
                t = qf + 4*r
                for e in range(4): g.e(f'v_mul_f32 v{t+e}, v{t+e}, v{72+16*n+4*e+r}')
                g.e(f'buffer_store_dwordx4 {vr(t,4)}, v{VO}, {srd(SRD_OUT)}, s13 offen{osc}')
                if r < 3: g.e('s_add_u32 s13, s13, 5120')
    allp = [(i, j) for i in range(8) for j in range(8 - i)]
    q2 = [(f'buffer_load_dwordx2 {vr(QR+2*r,2)}, v{VQ}, {srd(SRD_Q)}, s14 offen offset:{1280*r}', 'q') for r in range(4)]
    qt = (f'buffer_load_dword v4, v{VQT}, {srd(SRD_Q)}, 0 offen{NTQ}', 'qt')
    LL, LF = g.newlabel('LconvL'), g.newlabel('Lfin')
    g.e(f's_setprio 1\ns_cmp_ge_u32 s{sW}, 4\ns_cbranch_scc1 {LL}\ns_setprio 2')
    qt2 = (f'buffer_load_dword v4, v{VQT}, {srd(SRD_Q)}, s15 offen{NTQ}', 'qt')
    g.e(f's_mov_b32 s15, {128*1280}')
    conv_pass(allp, True, {(opt('qr', 1), 11): [qt], (opt('qr', 1), 27): [qt2]}, list(range(8)), VZ)
    stamp(g, 6)
    g.e('s_setprio 0')
    setflag()
    g.e(f's_mov_b32 s15, {512*1280}')
    for Q in range(2):
        for r in range(4): g.e(f'buffer_load_dwordx2 {vr(QR+8+8*Q+2*r,2)}, v{VQ}, {srd(SRD_Q)}, {"s15" if Q else "0"} offen offset:{1280*r}', tag='q0')
    for x, tag in q2: g.e(x, tag=tag)
    g.e(f"""
    v_and_b32 v5, 7, v0
    v_lshlrev_b32 v5, 2, v5
    v_add_u32 v5, {FLG}, v5
    v_and_b32 v8, 1, v0
    v_mul_u32_u24 v8, {4*RS-8192}, v8
    v_sub_u32 v8, v{VZR}, v8
    v_add_u32 v9, {2*RS}, v8
        """)
    g.wait_vm('q0')
    qunpack(QR + 8, 112, 8)
    g.wait_vm('q')
    g.e(f'v_add_u32 v4, {2*RS}, v{VZR}')
    qunpack(QR, 48, 4)
    waitflags(5)
    final([(0, 0, 112), (2048, 512, 128)], 8, 9)
    g.e(f's_branch {LF}')
    g.label(LL)
    g.vm = []
    XS = OPT.get('xs', 'sq')
    inX = {'tri': lambda p: sum(p) < 4, 'sq': lambda p: p[0] < 4 and p[1] < 4, 'i3': lambda p: p[0] < 4, 'r5': lambda p: p[0] < 4 and p[1] < 6}[XS]
    PX = [p for p in allp if inX(p)]; PY = [p for p in allp if not inX(p)]
    conv_pass(PX, True, {}, list(range(TS)), None)
    g.e(f's_lshl_b32 s13, s{sW}, 2\ns_add_u32 s13, s13, {FLG-16}\nv_mov_b32 v5, s13\nv_subrev_u32 v8, {4*RS-8192}, v{VZ}')
    waitflags(5)
    for T in range(TS): g.e(zw(T, 8))
    setflag()
    hk = {(2+r, 5): [q2[r]] for r in range(4)}
    for k in range(4):
        q_, t_ = QR + 2*k, 48 + 4*k
        hk[(7, 1 + 2*k)] = ([('s_waitcnt vmcnt(0)', None)] if k == 0 else []) + [(x, None) for x in (f'v_lshlrev_b32 v{t_}, 16, v{q_}', f'v_and_b32 v{t_+1}, s{sMK}, v{q_}')]
        hk[(7, 2 + 2*k)] = [(x, None) for x in (f'v_lshlrev_b32 v{t_+2}, 16, v{q_+1}', f'v_and_b32 v{t_+3}, s{sMK}, v{q_+1}')]
    hk[(7, 0)] = [(f'v_add_u32 v4, {2*RS}, v{VZR}', None)]
    conv_pass(PY, False, hk, list(range(TS, 8)), VZ, {sum(p) for p in PX})
    stamp(g, 6)
    g.label(LF)
    g.vm = []
    stamp(g, 7)
    g.e('s_waitcnt lgkmcnt(0)\ns_barrier')
    final([(4096, 1024, 48)], VZR, 4)
    if opt('wbl', 0):
        Lw = g.newlabel('Lwbl')
        g.e(f's_waitcnt vmcnt(0)\ns_barrier\ns_cmp_lg_u32 s{sW}, 0\ns_cbranch_scc1 {Lw}\nbuffer_wbl2 sc1\ns_waitcnt vmcnt(0)')
        g.label(Lw)
    if DIAG:
        g.wait_vm0(); stamp(g, 8); diag_out(g, 14)
    M.end_spin(g, TAG)
    g.e('s_endpgm')
```

```python
import sys
from asmlib import G, fix_hazards

NAME = "concat_heads__ssm_conv_h3__ssm_conv_s5__prompt"
DIAG = '--diag' in sys.argv
OPT = {a.split('=')[0][2:]: (a.split('=')[1] if '=' in a else '1') for a in sys.argv[1:] if a.startswith('--')}
def opt(n, d): return type(d)(OPT.get(n, d))

UR_OFF = 0
H_OFF = 0x400000
E_OFF = 0xA00000
FH_OFF = 0xB00000
FU_OFF = 0xC00000
DIAG_OFF = 0xD00000
SPIN_MAX = 20000
HS = opt('hs', 0)
NWG = 256 if (OPT.get('pf') or OPT.get('pm') or HS) else 240

P = dict(q=16, k=18, v=20, shk=22, ssmk=24, ssmD=26, x=28, Lre=30, Lim=32, Bre=34, Bim=36, Cre=38, Cim=40, logdt=42, Dskip=44, out=46, dbg=48, ws=50)
def sp(n): return 's[%d:%d]' % (P[n], P[n]+1)
sW, sXCD, sIDX = 3, 4, 5
SRD_WS, SRD_OUT, SRD_DBG = 68, 72, 76
def srd(b): return 's[%d:%d]' % (b, b+3)
def vr(b, n): return 'v[%d:%d]' % (b, b+n-1)
MF = 'v_mfma_f32_16x16x32_bf16'

def mk_srd(g, b, ptr, nbytes):
    if ptr == 'ws' and opt('wso', 0):
        o = opt('wso', 0) << 20
        g.e(f's_add_u32 s{b}, s{P[ptr]}, {o:#x}\ns_addc_u32 s{b+1}, s{P[ptr]+1}, 0\ns_mov_b32 s{b+2}, {nbytes-o:#x}\ns_mov_b32 s{b+3}, 0x20000')
        return
    g.e(f's_mov_b32 s{b}, s{P[ptr]}\ns_mov_b32 s{b+1}, s{P[ptr]+1}\ns_mov_b32 s{b+2}, {nbytes:#x}\ns_mov_b32 s{b+3}, 0x20000')

def stamp(g, i, grp=None):
    if OPT.get('probe') == f'{g.role}{grp or ""}{i}':
        g.e('s_memrealtime s[100:101]\ns_waitcnt lgkmcnt(0)\ns_mov_b32 s97, s100')
    if not DIAG: return
    if OPT.get('grp') != grp and not (grp is None and (i < 2 or g.role == 'A')): return
    if OPT.get('clk'):
        m = ({1: 0, 2: 1, 4: 2, 6: 3, 7: 4, 8: 5, 9: 6} if g.role == 'B' else {1: 0, 2: 1, 5: 2, 6: 3, 7: 4, 8: 5}).get(i)
        if m is None or grp is not None: return
        g.e(f's_memrealtime s[100:101]\ns_waitcnt lgkmcnt(0)\ns_mov_b32 s{84+m}, s100\ns_memtime s[100:101]\ns_waitcnt lgkmcnt(0)\ns_mov_b32 s{91+m}, s100')
        return
    op = 's_memtime' if OPT.get('cyc') else 's_memrealtime'
    g.e(f'{op} s[100:101]\ns_waitcnt lgkmcnt(0)\ns_mov_b32 s{84+i}, s100')

def diag_out(g, n):
    if not DIAG: return
    if not OPT.get('clk'): g.e('s_getreg_b32 s96, hwreg(HW_REG_XCC_ID)\ns_getreg_b32 s97, hwreg(HW_REG_HW_ID)\ns_getpc_b64 s[100:101]\ns_lshr_b64 s[100:101], s[100:101], 12\ns_mov_b32 s95, s100')
    g.e(f's_lshl_b32 s13, s2, 3\ns_add_u32 s13, s13, s{sW}\ns_lshl_b32 s13, s13, 6\ns_add_u32 s13, s13, {DIAG_OFF:#x}')
    g.e('s_mov_b64 exec, 1\nv_mov_b32 v1, 0')
    for i in range(n):
        g.e(f'v_mov_b32 v2, s{84+i}\nbuffer_store_dword v2, v1, {srd(SRD_WS)}, s13 offen offset:{4*i}')
    g.e('s_mov_b64 exec, -1')

def end_spin(g, vtag):
    pr = OPT.get('probe', '')
    if pr.startswith(g.role):
        L = g.newlabel('Lspin')
        g.e('s_waitcnt vmcnt(0)')
        if pr[1:] == 'e': g.e('s_memrealtime s[100:101]\ns_waitcnt lgkmcnt(0)\ns_mov_b32 s97, s100')
        g.e('s_add_u32 s13, s97, 2500')
        g.label(L)
        g.e(f's_memrealtime s[100:101]\ns_waitcnt lgkmcnt(0)\ns_sub_u32 s14, s100, s13\ns_cmp_lt_i32 s14, 0\ns_cbranch_scc1 {L}')
    if not OPT.get('spin'): return
    L = g.newlabel('Lspin')
    g.e(f's_waitcnt vmcnt(0)\nv_readfirstlane_b32 s13, v{vtag}\ns_add_u32 s13, s13, {int(OPT["spin"])}')
    g.label(L)
    g.e(f's_memrealtime s[100:101]\ns_waitcnt lgkmcnt(0)\ns_sub_u32 s14, s100, s13\ns_cmp_lt_i32 s14, 0\ns_cbranch_scc1 {L}')

def get_tag(g, vtag, vzero):
    keep = list(g.vm)
    L = g.newlabel('Ltag'); D = g.newlabel('Ltagd')
    g.e(f's_mov_b32 s15, {SPIN_MAX}')
    g.label(L)
    g.e(f'v_cmp_eq_u32 vcc, 0, v{vtag}\ns_cbranch_vccz {D}')
    g.e(f'buffer_load_dword v{vtag}, v{vzero}, {srd(SRD_DBG)}, 0 offen sc1')
    g.wait_vm0()
    g.e(f's_sub_u32 s15, s15, 1\ns_cmp_lg_u32 s15, 0\ns_cbranch_scc1 {L}')
    g.label(D)
    g.vm = keep

def cmul(g, dr, di, ar_, ai, br, bi):
    g.e(f'v_mul_f32 v{dr}, v{ar_}, v{br}\nv_mul_f32 v{di}, v{ar_}, v{bi}')
    g.e(f'v_fma_f32 v{dr}, -v{ai}, v{bi}, v{dr}\nv_fmac_f32 v{di}, v{ai}, v{br}')
def cfma(g, dr, di, ar_, ai, br, bi, cr, ci):
    g.e(f'v_fma_f32 v{dr}, v{ar_}, v{br}, v{cr}\nv_fma_f32 v{di}, v{ar_}, v{bi}, v{ci}')
    g.e(f'v_fma_f32 v{dr}, -v{ai}, v{bi}, v{dr}\nv_fmac_f32 v{di}, v{ai}, v{br}')

def spread(g, slots, fill):
    n = len(slots); k = len(fill); fi = 0
    for i, sl in enumerate(slots):
        for x in sl: g.e(x)
        tgt = (k * (i + 1) + n - 1) // n
        while fi < min(tgt, k):
            for ins, tag in fill[fi]: g.e(ins, tag=tag)
            fi += 1
def group_dma(lst, tag):
    items = []; cur = []
    for ins in lst:
        cur.append((ins, tag))
        if ins.startswith('buffer_'): items.append(cur); cur = []
    if cur: items[-1] += cur
    return items
def emit_items(g, items):
    for it in items:
        for ins, tag in it: g.e(ins, tag=tag)

def role_B(g):
    sQ5, sN, sC, sJ, sRB, sROT, sK = 6, 7, 8, 9, 10, 11, 12
    SRD_G1, SRD_C, SRD_X = 52, 56, 60
    sTB = 62
    sM0, sCK, sWD, sKH = 82, 83, 64, 65
    sT0 = 16
    sHS, sFW, sFR, sHB = 20, 21, 22, 23
    vD = 16
    vA, vB = 20, 24
    GA = 96
    (LR, LI, NLI, C2R, C2I, L16R, L16I, W7R, W7I, MSR, MSI, TAG, ZERO, PAT, VP32, VHF) = range(28, 44)
    ZA, ZT, LRE, LIM, VSG, VEB, LQR, LQI, WGR, WGI, PR, PI, VEW, VER = range(44, 58)
    EO, TK = 176, 184
    ACR, ACI = 64, 80
    CB = 96
    F = [208, 232]
    MF32 = 'v_mfma_f32_32x32x16_bf16'
    g.c('==== role B ====')
    ORD = OPT.get('ord', 'h6')
    def orders(name):
        if name == 'g4b': return [[g_, (g_+1)%4, 4+g_, (g_+2)%4, (g_+3)%4, 8+(g_&1), 4+(g_+1)%4, 4+(g_+2)%4, 4+(g_+3)%4, 9-(g_&1)] for g_ in range(4)]
        if name == 'g4c': return [[g_, 4+g_, (g_+1)%4, (g_+2)%4, 8+(g_&1), (g_+3)%4, 4+(g_+1)%4, 4+(g_+2)%4, 4+(g_+3)%4, 9-(g_&1)] for g_ in range(4)]
        if name == 'h4': return [[g_, (g_+1)%4, (g_+2)%4, (g_+3)%4, 4, 5, 6, 7, 8, 9] for g_ in range(4)]
        if name == 'h2': return [[g_, 1-g_, 2, 3, 4, 5, 6, 7, 8, 9] for g_ in range(2)]
        if name == 'h4b': return [[g_, 2+g_, 1-g_, 3-g_, 4, 5, 6, 7, 8, 9] for g_ in range(2)]
        if name == 'h6': return [[g_, 3+g_, (g_+1)%3, (g_+2)%3, 3+(g_+1)%3, 3+(g_+2)%3, 6, 7, 8, 9] for g_ in range(3)]
        if name == 'h6b': return [[g_, (g_+1)%3, 3+g_, (g_+2)%3, 3+(g_+1)%3, 3+(g_+2)%3, 6, 7, 8, 9] for g_ in range(3)]
        if name == 'h4m': return [[g_, (g_+1)%4, (g_+2)%4, (g_+3)%4] + [c ^ (g_ & 1) for c in range(4, 10)] for g_ in range(4)]
        if name == 'h4bm': return [[g_, 2+g_, 1-g_, 3-g_] + [c ^ g_ for c in range(4, 10)] for g_ in range(2)]
        if name == 'h2m': return [[c ^ g_ for c in range(10)] for g_ in range(2)]
        if name == 'h6m': return [[g_, 4+(g_&1), (g_+1)%4, (g_+2)%4, (g_+3)%4, 5-(g_&1)] + [c ^ (g_ & 1) for c in range(6, 10)] for g_ in range(4)]
        if name == 'h8m': return [[g_, 4+g_, (g_+1)%4, (g_+2)%4, (g_+3)%4, 4+(g_+1)%4, 4+(g_+2)%4, 4+(g_+3)%4, 8+(g_&1), 9-(g_&1)] for g_ in range(4)]
    tabs = orders(ORD); NG = len(tabs)
    modt = sum((v % NG) << (4*v) for v in range(8))
    g.e(f"""
    s_mul_i32 s{sQ5}, s{sIDX}, 52
    s_lshr_b32 s{sQ5}, s{sQ5}, 8
    s_mul_i32 s13, s{sQ5}, 5
    s_sub_u32 s14, s{sIDX}, s13
    s_lshr_b32 s{sC}, s{sXCD}, 1
    s_lshl_b32 s{sC}, s{sC}, 2
    s_add_u32 s{sC}, s{sC}, s{sQ5}
    s_and_b32 s{sJ}, s{sXCD}, 1
    s_mul_i32 s{sJ}, s{sJ}, 5
    s_add_u32 s{sJ}, s{sJ}, s14
    s_and_b32 s{sWD}, s{sW}, 3
    s_lshr_b32 s{sKH}, s{sW}, 2
    s_lshl_b32 s{sM0}, s{sW}, 12
    s_add_u32 s13, s{sQ5}, s14
    s_lshl_b32 s13, s13, 2
    s_lshr_b32 s13, {modt:#x}, s13
    s_and_b32 s13, s13, 15
    """)
    for gi, t_ in enumerate(tabs):
        assert sorted(t_) == list(range(10))
        val = sum(c << (4*i) for i, c in enumerate(t_))
        if gi == 0: g.e(f's_mov_b32 s{sTB}, {val & 0xffffffff:#x}\ns_mov_b32 s{sTB+1}, {val >> 32:#x}')
        else:
            g.e(f's_cmp_eq_u32 s13, {gi}\ns_cselect_b32 s{sTB}, {val & 0xffffffff:#x}, s{sTB}')
            if len({sum(c << (4*i) for i, c in enumerate(t2)) >> 32 for t2 in tabs}) > 1: g.e(f's_cselect_b32 s{sTB+1}, {val >> 32:#x}, s{sTB+1}')
    g.e(f"""
    v_lshrrev_b32 v{VHF}, 5, v0
    v_bfe_u32 v2, v0, 3, 2
    v_lshl_add_u32 v1, v{VHF}, 4, v2
    v_lshrrev_b32 v2, 3, v0
    s_lshl_b32 s13, s{sC}, 2
    s_add_u32 s13, s13, s{sW}
    s_lshl_b32 s14, s{sJ}, 1
    s_and_b32 s15, s{sW}, 1
    s_add_u32 s14, s14, s15
    s_cmp_lt_u32 s{sW}, 4
    s_cselect_b32 s13, s13, s14
    s_cselect_b64 vcc, -1, 0
    s_movk_i32 s66, {8*1280-1024}
    s_cselect_b32 s66, {4*1280-1024}, s66
    s_lshl_b32 s13, s13, 5
    s_lshl_b32 s67, s66, 1
    v_cndmask_b32 v1, v2, v1, vcc
    v_add_u32 v1, s13, v1
    v_mul_u32_u24 v1, 1280, v1
    v_and_b32 v3, 7, v0
    v_lshrrev_b32 v4, 4, v0
    v_xor_b32 v3, v3, v4
    v_lshlrev_b32 v3, 4, v3
    v_xor_b32 v4, 64, v3
    v_add_u32 v{vD}, v1, v3
    v_add3_u32 v{vD+1}, v1, v4, s66
    v_add_u32 v{vD+2}, s67, v{vD}
    v_add_u32 v{vD+3}, s67, v{vD+1}
    v_and_b32 v{VP32}, 31, v0
    s_lshl_b32 s13, s{sJ}, 1
    s_add_u32 s13, s13, s{sKH}
    s_lshl_b32 s13, s13, 5
    v_add_lshl_u32 v5, v{VP32}, s13, 1
    s_mov_b32 s{SRD_G1+2}, 819200
    s_mov_b32 s{SRD_G1+3}, 0x20000
    s_waitcnt lgkmcnt(0)
    """)
    stamp(g, 0)
    g.e(f"""
    s_cmp_ge_u32 s{sW}, 6
    s_cselect_b32 s{SRD_G1}, s{P['Bim']}, s{P['Bre']}
    s_cselect_b32 s{SRD_G1+1}, s{P['Bim']+1}, s{P['Bre']+1}
    s_cmp_lt_u32 s{sW}, 4
    s_cselect_b32 s{SRD_G1}, s{P['x']}, s{SRD_G1}
    s_cselect_b32 s{SRD_G1+1}, s{P['x']+1}, s{SRD_G1+1}
    s_cselect_b32 s{SRD_G1+2}, 2621440, s{SRD_G1+2}
    """)
    def g1_dma(s):
        out = [f's_bfe_u32 s{sK}, s{sTB + (s >> 3)}, {(4*(s & 7)) | (4 << 16):#x}', f's_lshl_b32 s{sK}, s{sK}, 7', f's_add_u32 m0, s{sM0}, {(s & 3)*32768}']
        return out + [f'buffer_load_dwordx4 v{vD+i}, {srd(SRD_G1)}, s{sK} offen offset:{1024*i} lds' for i in range(4)]
    for ins in g1_dma(0): g.e(ins, tag='g0')
    for ins in g1_dma(1): g.e(ins, tag='g1')
    g.e(f'global_load_ushort v{LRE}, v5, {sp("Lre")}\nglobal_load_ushort v{LIM}, v5, {sp("Lim")}\nglobal_load_ushort v{ZA}, v5, {sp("logdt")}', tag='par')
    mk_srd(g, SRD_DBG, 'dbg', 256)
    g.e(f'v_mov_b32 v{ZERO}, 0')
    Ln = g.newlabel('Lnon')
    g.e(f's_or_b32 s13, s{sIDX}, s{sW}\ns_cmp_lg_u32 s13, 0\ns_cbranch_scc1 {Ln}')
    g.e(f's_or_b32 s14, s98, 1\nv_mov_b32 v6, s14\nv_mov_b32 v7, 0\ns_mov_b64 exec, 1')
    g.lines.append(f'    buffer_atomic_cmpswap v[6:7], v{ZERO}, {srd(SRD_DBG)}, 0 offen sc1')
    g.e('s_mov_b64 exec, -1')
    g.label(Ln)
    g.e(f"""
    v_bfe_u32 v2, v0, 1, 3
    v_xor_b32 v1, v{VHF}, v2
    v_lshlrev_b32 v1, 4, v1
    v_lshl_add_u32 v{PAT}, v{VP32}, 7, v1
    s_lshl_b32 s13, s{sWD}, 12
    s_lshl_b32 s14, s{sKH}, 12
    s_add_u32 s14, s14, 16384
    v_add_u32 v{GA}, s13, v{PAT}
    v_add_u32 v{GA+8}, s14, v{PAT}
    """)
    for ks in range(1, 4): g.e(f'v_xor_b32 v{GA+ks}, {32*ks}, v{GA}\nv_xor_b32 v{GA+8+ks}, {32*ks}, v{GA+8}')
    for ks in range(4): g.e(f'v_add_u32 v{GA+4+ks}, 0x10000, v{GA+ks}\nv_add_u32 v{GA+12+ks}, 0x10000, v{GA+8+ks}')
    MAPC = f'''s_and_b32 s13, s{sXCD}, 1
    s_lshr_b32 s14, s{sIDX}, 3
    s_mul_i32 s{sN}, s13, 3
    s_add_u32 s{sN}, s{sN}, s14
    s_and_b32 s15, s{sIDX}, 7
    s_lshl_b32 s13, s13, 2
    s_add_u32 s13, s13, s15
    s_cmp_ge_u32 s{sIDX}, 16
    s_cselect_b32 s{sN}, 2, s{sN}
    s_cselect_b32 s13, s13, s15
    s_cselect_b32 s{sROT}, 10, 5
    s_lshr_b32 s{sRB}, s{sXCD}, 1
    s_lshl_b32 s{sRB}, s{sRB}, 3
    s_add_u32 s{sRB}, s{sRB}, s13
    s_mul_i32 s{sROT}, s{sROT}, s15
    s_lshr_b32 s{sROT}, s{sROT}, 2
    s_mul_i32 s14, s14, 3
    s_add_u32 s{sROT}, s{sROT}, s14''' if opt('map', 2) == 2 else f'''s_mul_i32 s13, s{sQ5}, 5
    s_sub_u32 s{sN}, s{sIDX}, s13
    s_lshl_b32 s{sRB}, s{sXCD}, 2
    s_add_u32 s{sRB}, s{sRB}, s{sQ5}
    s_add_u32 s13, s13, 1
    s_lshr_b32 s13, s13, 1
    s_lshl_b32 s{sROT}, s{sN}, 1
    s_add_u32 s{sROT}, s{sROT}, s13'''
    OWN = opt('own', 1)
    if OWN:
        MAPC = f'''s_mul_i32 s13, s{sQ5}, 4
    s_sub_u32 s13, s{sIDX}, s13
    s_sub_u32 s14, s13, 5
    s_cmp_ge_u32 s13, 5
    s_cselect_b32 s13, s14, s13
    s_and_b32 s15, s{sXCD}, 1
    s_mul_i32 s{sN}, s15, 3
    s_and_b32 s14, s13, 1
    s_add_u32 s{sN}, s{sN}, s14
    s_lshr_b32 s14, s13, 1
    s_cmp_eq_u32 s13, 4
    s_cselect_b32 s{sN}, 2, s{sN}
    s_cselect_b32 s14, s15, s14
    s_lshl_b32 s{sRB}, s{sC}, 1
    s_add_u32 s{sRB}, s{sRB}, s14
    s_mov_b32 s{sROT}, s{sJ}'''
    STEP = opt('step', 3) if OWN else 1
    g.e(f"""
    {MAPC}
    s_sub_u32 s13, s{sROT}, 10
    s_cmp_ge_u32 s{sROT}, 10
    s_cselect_b32 s{sROT}, s13, s{sROT}
    {"s_mov_b32 s%d, 0" % sROT if OPT.get('rot0') else ""}
    s_lshl_b32 s{sCK}, s{sROT}, 7
    s_cmp_ge_u32 s{sW}, 4
    s_cselect_b32 s{SRD_C}, s{P['Cim']}, s{P['Cre']}
    s_cselect_b32 s{SRD_C+1}, s{P['Cim']+1}, s{P['Cre']+1}
    s_mov_b32 s{SRD_C+2}, 819200
    s_mov_b32 s{SRD_C+3}, 0x20000
    s_lshl_b32 s13, s{sN}, 7
    s_lshl_b32 s14, s{sWD}, 5
    s_add_u32 s13, s13, s14
    v_lshrrev_b32 v1, 3, v0
    v_add_u32 v1, s13, v1
    v_mul_u32_u24 v1, 1280, v1
    v_add_u32 v60, v1, v3
    v_add_u32 v61, v1, v4
    v_add_u32 v61, {8*1280-1024}, v61
    v_add_u32 v62, {16*1280-2048}, v60
    v_add_u32 v63, {16*1280-2048}, v61
    s_lshl_b32 s13, s{sWD}, 1
    v_add_u32 v{VSG}, s13, v{VHF}
    s_mul_i32 s13, s{sKH}, 4608
    s_add_u32 s13, s13, 0x20000
    v_mul_u32_u24 v{VER}, 144, v{VP32}
    v_add_u32 v{VER}, s13, v{VER}
    v_lshl_add_u32 v{VEW}, v{VSG}, 4, v{VER}
    s_lshl_b32 s13, s{sJ}, 14
    s_lshl_b32 s14, s{sKH}, 9
    s_add_u32 s13, s13, s14
    s_add_u32 s13, s13, {E_OFF:#x}
    v_lshl_add_u32 v{VEB}, v{VP32}, 4, s13
    """)
    CT = opt('ct', 1) and OWN
    if CT:
        perms = [[0,1,2,3,4,5,6,7,8,9], [2,3,0,1,6,7,4,5,9,8], [1,0,3,2,5,4,8,9,6,7]]
        vals = [sum(c << (4*i) for i, c in enumerate(p_)) for p_ in perms]
        g.e(f's_mov_b32 s14, {vals[0] & 0xffffffff:#x}\ns_mov_b32 s15, {vals[0] >> 32:#x}')
        g.e(f's_cmp_eq_u32 s{sN}, 2\ns_cselect_b32 s14, {vals[2] & 0xffffffff:#x}, s14\ns_cselect_b32 s15, {vals[2] >> 32:#x}, s15')
        g.e(f's_cmp_eq_u32 s{sN}, 1\ns_cselect_b32 s14, {vals[1] & 0xffffffff:#x}, s14\ns_cselect_b32 s15, {vals[1] >> 32:#x}, s15')
        g.e(f's_cmp_eq_u32 s{sN}, 4\ns_cselect_b32 s14, {vals[1] & 0xffffffff:#x}, s14\ns_cselect_b32 s15, {vals[1] >> 32:#x}, s15')
        g.e(f's_lshl_b32 s30, s{sJ}, 7')
        for u in range(1, 10):
            g.e(f's_and_b32 s13, s14, 15\ns_cmp_eq_u32 s13, s{sJ}\ns_cselect_b32 s13, 4, 0\ns_lshr_b64 s[14:15], s[14:15], s13')
            g.e(f's_and_b32 s13, s14, 15\ns_lshl_b32 s{30+u}, s13, 7\ns_lshr_b64 s[14:15], s[14:15], 4')
    LORD = [int(x) for x in OPT.get('lord', '1,2,3,4,0,5,6,7,8,9').split(',')] if CT else list(range(10))
    lpos = [0]
    vC = 60
    DSK, VXF = 58, 59
    SRD_X = 24
    mk_srd(g, SRD_X, 'x', 2621440)
    g.e(f"""
    s_lshl_b32 s{sT0+2}, s{sW}, 11
    s_add_u32 s{sT0+2}, s{sT0+2}, 0x23000
    v_lshlrev_b32 v{VXF}, 6, v{VP32}
    v_lshl_add_u32 v{VXF}, v{VHF}, 4, v{VXF}
    v_add_u32 v{VXF}, s{sT0+2}, v{VXF}
    s_lshl_b32 s13, s{sRB}, 6
    s_lshl_b32 s14, s{sKH}, 5
    s_add_u32 s13, s13, s14
    v_lshrrev_b32 v14, 2, v0
    v_add_u32 v14, s13, v14
    v_mul_u32_u24 v14, 1280, v14
    v_and_b32 v15, 3, v0
    v_lshl_add_u32 v14, v15, 4, v14
    s_lshl_b32 s13, s{sN}, 8
    s_lshl_b32 s14, s{sWD}, 6
    s_add_u32 s13, s13, s14
    v_add_u32 v14, s13, v14
    s_movk_i32 s{sT0+3}, {16*1280-1024}
    v_lshl_add_u32 v15, v{VP32}, 1, s13
    """)
    XE = opt('xe', 1)
    xitems = [[(f's_mov_b32 m0, s{sT0+2}', None), (f'buffer_load_dwordx4 v14, {srd(SRD_X)}, 0 offen lds', 'xd'), (f'global_load_ushort v{DSK}, v15, {sp("Dskip")}', 'xd')],
              [(f'buffer_load_dwordx4 v14, {srd(SRD_X)}, s{sT0+3} offen offset:1024 lds', 'xd')]]
    mk_srd(g, SRD_WS, 'ws', 0x10000000)
    def power(gg, dr, di, n):
        gg.e(f"""
        v_mul_f32 v11, {n}, v{ZA}
        v_mul_f32 v12, {n}, v{ZT}
        v_exp_f32 v11, v11
        v_fract_f32 v12, v12
        v_cos_f32 v{dr}, v12
        v_sin_f32 v{di}, v12
        v_mul_f32 v{dr}, v11, v{dr}
        v_mul_f32 v{di}, v11, v{di}
        """)
    gp = G(); gp.role = 'B'
    gp.e(f"""
    v_lshlrev_b32 v{LRE}, 16, v{LRE}
    v_lshlrev_b32 v{LIM}, 16, v{LIM}
    v_lshlrev_b32 v10, 16, v{ZA}
    v_mul_f32 v10, 0x3fb8aa3b, v10
    v_exp_f32 v10, v10
    v_cvt_pk_bf16_f32 v10, v10, v10
    v_lshlrev_b32 v10, 16, v10
    v_mul_f32 v{ZA}, v10, v{LRE}
    v_mul_f32 v{ZT}, v10, v{LIM}
    v_mul_f32 v{ZA}, 0x3fb8aa3b, v{ZA}
    v_mul_f32 v{ZT}, 0.15915494, v{ZT}
    v_lshlrev_b32 v13, 4, v{VSG}
    v_cvt_f32_u32 v13, v13
    v_sub_f32 v13, 0x42e00000, v13
    """)
    power(gp, LR, LI, '1.0')
    gp.e(f'v_sub_f32 v{NLI}, 0, v{LI}')
    power(gp, W7R, W7I, 'v13')
    par1 = [l.strip() for l in gp.lines]

    def c_dma(bf):
        out = [f's_add_u32 m0, s{sM0}, {bf*32768}']
        if CT:
            u = LORD[lpos[0]]; lpos[0] += 1
            return out + [f'buffer_load_dwordx4 v{vC+i}, {srd(SRD_C)}, s{30+u} offen offset:{1024*i} lds' for i in range(4)]
        out += [f'buffer_load_dwordx4 v{vC+i}, {srd(SRD_C)}, s{sCK} offen offset:{1024*i} lds' for i in range(4)]
        return out + [f's_add_u32 s{sCK}, s{sCK}, {128*STEP}', f's_cmp_ge_u32 s{sCK}, 1280', f's_cselect_b32 s66, 1280, 0', f's_sub_u32 s{sCK}, s{sCK}, s66']
    def creg(u, ks): return vr(CB + 16*u + 4*ks, 4)
    def c_read(u, bf):
        for ks in range(4): g.e(f'ds_read_b128 {creg(LORD[u], ks)}, v{(vB if bf >= 2 else vA) + ks} offset:{(bf&1)*32768}')

    def g1_reads(n):
        s, hh = n >> 1, n & 1; fb = F[n & 1]; sb = s & 3; hi = 4 if sb >= 2 else 0; o = (sb & 1) * 32768
        out = []
        if OPT.get('nords'): return out
        for k2 in range(2):
            ks = 2*hh + k2; b = fb + 12*k2
            out += [f'ds_read_b128 {vr(b,4)}, v{GA+hi+ks} offset:{o}', f'ds_read_b128 {vr(b+4,4)}, v{GA+8+hi+ks} offset:{o}', f'ds_read_b128 {vr(b+8,4)}, v{GA+8+hi+ks} offset:{o+8192}']
        return out
    def g1_mfma(n):
        fb = F[n & 1]
        if OPT.get('nomf'): return ['s_nop 0'] * 4
        return [f'{MF32} {vr(acc,16)}, {vr(fb+12*k2,4)}, {vr(fb+12*k2+4+4*part,4)}, {"0" if n == 0 and k2 == 0 else vr(acc,16)}'
                for k2 in range(2) for part, acc in ((0, ACR), (1, ACI))]
    NC1 = opt('nc1', 2)
    cplan = []
    stamp(g, 1)
    g.wait_vm('g0'); g.e('s_barrier')
    stamp(g, 2, 'g1')
    for r in g1_reads(0): g.e(r)
    queue = group_dma(g1_dma(2), 'g2') + group_dma(g1_dma(3), 'g3')
    emit_items(g, queue[:2]); queue = queue[2:]
    PF = opt('pfs', 14)
    for n in range(20):
        s = n >> 1
        g.e('s_waitcnt lgkmcnt(0)')
        rd = g1_reads(n+1) if n < 19 else []
        fillv = []
        if PF <= n < PF + 4: q4 = (len(par1) + 3) // 4; fillv = par1[(n-PF)*q4:(n-PF+1)*q4]
        for q, m in enumerate(g1_mfma(n)):
            g.e(m)
            for r in rd[2*q:2*q+2]: g.e(r)
            if q == 2 and n % 2 == 0 and s < 9:
                g.wait_vm(f'g{s+1}'); g.e('s_barrier')
                stamp(g, 3 + s, 'g1')
                if s >= 1 and s + 3 <= 9: queue += group_dma(g1_dma(s+3)[:(4 if OPT.get('nodma') else 99)], f'g{s+3}')
                if s == 7 and XE: queue += xitems
                if s >= 7 and len(cplan) < NC1 and s >= opt('cs0', 7):
                    queue += group_dma(c_dma((s-1) & 3), 'c1'); cplan.append((len(cplan), (s-1) & 3))
                if s == 2: queue[0] = [(f'buffer_load_dword v{TAG}, v{ZERO}, {srd(SRD_DBG)}, 0 offen sc1', 'tag')] + queue[0]
            k4 = (len(fillv) + 3) // 4
            for x in fillv[q*k4:(q+1)*k4]: g.e(x)
            if (q in (1, 3) or ((n < 3 or n > 14) and q == 0)) and queue: emit_items(g, [queue.pop(0)])
    assert not queue and g.vmN('par') is None and g.vmN('tag') is None
    get_tag(g, TAG, ZERO)
    stamp(g, 2); stamp(g, 12, 'g1')
    h = (ACR, ACI); pp = [(12, 13), (8, 9)]
    for t in range(1, 16):
        d = pp[t & 1]
        g.e(f'v_fma_f32 v{d[0]}, v{NLI}, v{h[1]}, v{ACR+t}\nv_fma_f32 v{d[1]}, v{LI}, v{h[0]}, v{ACI+t}')
        g.e(f'v_fmac_f32 v{d[0]}, v{LR}, v{h[0]}\nv_fmac_f32 v{d[1]}, v{LR}, v{h[1]}')
        h = d
    cmul(g, 10, 11, 8, 9, W7R, W7I)
    g.e(f'ds_write_b128 v{VEW}, v[8:11]\ns_waitcnt lgkmcnt(0)\ns_barrier')
    EV = 208
    for k in range(8): g.e(f'ds_read_b128 {vr(EV+4*k,4)}, v{VER} offset:{16*k}')
    Lp = g.newlabel('Lpub')
    g.e(f"""
    s_cmp_lg_u32 s{sWD}, 0
    s_cbranch_scc1 {Lp}
    s_lshl_b32 s13, s{sC}, 10
    v_mov_b32 v9, v{TAG}
    v_mov_b32 v11, v{TAG}
    s_waitcnt lgkmcnt(0)
    v_add_f32 v8, v{EV+2}, v{EV+6}
    v_add_f32 v10, v{EV+3}, v{EV+7}
    v_add_f32 v1, v{EV+10}, v{EV+14}
    v_add_f32 v2, v{EV+11}, v{EV+15}
    v_add_f32 v12, v{EV+18}, v{EV+22}
    v_add_f32 v13, v{EV+19}, v{EV+23}
    v_add_f32 v5, v{EV+26}, v{EV+30}
    v_add_f32 v6, v{EV+27}, v{EV+31}
    v_add_f32 v8, v8, v1
    v_add_f32 v10, v10, v2
    v_add_f32 v12, v12, v5
    v_add_f32 v13, v13, v6
    v_add_f32 v8, v8, v12
    v_add_f32 v10, v10, v13
    s_mov_b32 exec_hi, 0
    """)
    g.lines.append(f'    buffer_store_dwordx4 v[8:11], v{VEB}, {srd(SRD_WS)}, s13 offen sc1')
    g.e('s_mov_b64 exec, -1')
    g.label(Lp)
    stamp(g, 3)
    g.e(f"""
    v_add_u32 v{vA}, s{sM0}, v{PAT}
    v_xor_b32 v{vA+1}, 32, v{vA}
    v_xor_b32 v{vA+2}, 64, v{vA}
    v_xor_b32 v{vA+3}, 96, v{vA}
    v_add_u32 v{vB}, 0x10000, v{vA}
    v_add_u32 v{vB+1}, 0x10000, v{vA+1}
    v_add_u32 v{vB+2}, 0x10000, v{vA+2}
    v_add_u32 v{vB+3}, 0x10000, v{vA+3}
    """)
    if not XE: emit_items(g, xitems)
    free = [b_ for b_ in range(4) if b_ not in [x[1] for x in cplan]]
    NE = opt('ne', 2); assert NE <= len(free)
    nxt = len(cplan); plan2 = []; fill = []
    for bf in free[:NE]:
        fill += group_dma(c_dma(bf), 'c2'); plan2.append((nxt, bf)); nxt += 1
    g.e(f's_lshl_b32 s13, s{sWD}, 2\ns_sub_u32 s13, s{sC}, s13\ns_sub_u32 s13, s13, 1\nv_sub_u32 v13, s13, v{VHF}\nv_mov_b32 v12, 0x80000000')
    for k in range(2):
        g.e(f'v_lshl_add_u32 v{EO+k}, v13, 10, v{VEB}\nv_cmp_le_i32 vcc, 0, v13\nv_cndmask_b32 v{EO+k}, v12, v{EO+k}, vcc\nv_cndmask_b32 v{TK+k}, 0, v{TAG}, vcc')
        if k < 1: g.e('v_subrev_u32 v13, 2, v13')
    gg = G(); gg.role = 'B'
    gg.e(f"""
    v_add_f32 v1, -1.0, v{LR}
    v_mul_f32 v2, v{LRE}, v{LRE}
    v_fmac_f32 v2, v{LIM}, v{LIM}
    v_rcp_f32 v2, v2
    v_mul_f32 v13, v1, v{LRE}
    v_fmac_f32 v13, v{LI}, v{LIM}
    v_mul_f32 v14, v{LI}, v{LRE}
    v_fma_f32 v14, -v1, v{LIM}, v14
    v_add_f32 v2, v2, v2
    v_mul_f32 v{C2R}, v13, v2
    v_mul_f32 v{C2I}, v14, v2
    v_lshlrev_b32 v13, 4, v{VSG}
    v_cvt_f32_u32 v13, v13
    """)
    power(gg, L16R, L16I, '0x41800000')
    power(gg, 14, 15, 'v13')
    cmul(gg, MSR, MSI, 14, 15, C2R, C2I)
    NK = 2
    gg.e(f's_lshl_b32 s13, s{sWD}, 2\nv_add_u32 v15, s13, v{VHF}\nv_lshlrev_b32 v13, 7, v15\nv_cvt_f32_u32 v13, v13')
    power(gg, WGR, WGI, 'v13')
    gg.e('v_add_f32 v13, 0x43800000, v13')
    power(gg, LQR, LQI, 'v13')
    gg.e(f's_lshl_b32 s13, s{sKH}, 10\ns_add_u32 s13, s13, 0x22400\nv_lshl_add_u32 v{VER}, v{VP32}, 5, s13\ns_lshl_b32 s13, s{sWD}, 3\nv_add_u32 v{VEW}, s13, v{VER}')
    gg.e(f's_waitcnt lgkmcnt(0)\nv_mov_b32 v14, 0\nv_mov_b32 v15, 0')
    cur = (EV, EV+1)
    for k in range(7):
        if k > 0:
            d = (1, 2) if k & 1 else (5, 6)
            cfma(gg, d[0], d[1], L16R, L16I, cur[0], cur[1], EV+4*k, EV+4*k+1); cur = d
        gg.e(f'v_cmp_eq_u32 vcc, {k+1}, v{VSG}\nv_cndmask_b32 v14, v14, v{cur[0]}, vcc\nv_cndmask_b32 v15, v15, v{cur[1]}, vcc')
    cmul(gg, PR, PI, 14, 15, C2R, C2I)
    L1 = [l.strip() for l in gg.lines]
    spread(g, [L1[i:i+8] for i in range(0, len(L1), 8)], fill)
    EP = 192
    def epoll(tag=None):
        for k in range(2): g.e(f'buffer_load_dwordx4 {vr(EP+4*k,4)}, v{EO+k}, {srd(SRD_WS)}, 0 offen sc1', tag=tag)
    Lpoll, Lchk, Ldone = g.newlabel('Lepoll'), g.newlabel('Lechk'), g.newlabel('Ledone')
    epoll('ep')
    for t in range(16):
        tt = 6 + (t & 1)
        g.e(f'v_mul_f32 v{tt}, v{C2I}, v{ACI+t}\nv_mul_f32 v{ACI+t}, v{C2R}, v{ACI+t}\nv_fmac_f32 v{ACI+t}, v{C2I}, v{ACR+t}\nv_fma_f32 v{ACR+t}, v{C2R}, v{ACR+t}, -v{tt}')
    g.e(f"""
    v_lshlrev_b32 v1, 4, v0
    v_and_b32 v2, 15, v0
    v_mul_u32_u24 v13, 24, v{VHF}
    v_xor_b32 v13, v13, v2
    v_lshlrev_b32 v13, 4, v13
    v_bfe_u32 v2, v0, 4, 1
    v_lshl_add_u32 v13, v2, 12, v13
    v_xor_b32 v14, 64, v13
    s_lshr_b32 s13, s{sWD}, 1
    s_lshl_b32 s14, s{sC}, 1
    s_add_u32 s13, s13, s14
    s_mul_i32 s13, s13, 10
    s_add_u32 s13, s13, s{sJ}
    s_lshl_b32 s{sHS}, s13, 14
    s_lshl_b32 s13, s{sKH}, 13
    s_add_u32 s{sHS}, s{sHS}, s13
    s_and_b32 s13, s{sWD}, 1
    s_lshl_b32 s13, s13, 9
    s_add_u32 s{sHS}, s{sHS}, s13
    s_add_u32 s{sHS}, s{sHS}, {H_OFF:#x}
    s_lshl_b32 s14, s{sC}, 5
    s_add_u32 s14, s14, s{sJ}
    s_lshl_b32 s{sFW}, s14, 2
    s_add_u32 s{sFW}, s{sFW}, {FH_OFF:#x}
    s_lshr_b32 s{sFR}, s{sRB}, 1
    s_lshl_b32 s{sFR}, s{sFR}, 7
    s_add_u32 s{sFR}, s{sFR}, {FH_OFF:#x}
    s_mov_b32 s15, {SPIN_MAX}
    """)
    g.wait_vm('c2' if plan2 else ('c1' if cplan and XE else 'xd'))
    XF, DG = 244, 208
    assert max([0] + [LORD[u] for u, _ in cplan + plan2]) <= 4
    for u, bf in cplan + plan2: c_read(u, bf)
    for s_ in range(2): g.e(f'ds_read_b128 {vr(XF+4*s_,4)}, v{VXF} offset:{32*s_}')
    g.e(f's_branch {Lchk}')
    g.label(Lpoll)
    epoll()
    g.label(Lchk)
    g.wait_vm0()
    g.e(f'v_xor_b32 v8, v{TK}, v{EP+1}\nv_xor_b32 v9, v{TK}, v{EP+3}\nv_xor_b32 v10, v{TK+1}, v{EP+5}\nv_xor_b32 v11, v{TK+1}, v{EP+7}\nv_or3_b32 v8, v8, v9, v10')
    g.e(f'v_or_b32 v8, v8, v11\nv_cmp_ne_u32 vcc, 0, v8\ns_cbranch_vccz {Ldone}\ns_sub_u32 s15, s15, 1\ns_cmp_lg_u32 s15, 0\ns_cbranch_scc1 {Lpoll}')
    g.label(Ldone)
    SR, SI = 8, 9
    cmul(g, 10, 11, WGR, WGI, EP, EP+2)
    cfma(g, SR, SI, LQR, LQI, EP+4, EP+6, 10, 11)
    sw = 'v_permlane32_swap_b32'
    g.e(f'v_mov_b32 v10, v{SR}\nv_mov_b32 v11, v{SI}\n{sw} v10, v{SR}\n{sw} v11, v{SI}\nv_add_f32 v{SR}, v{SR}, v10\nv_add_f32 v{SI}, v{SI}, v11')
    g.e(f'ds_write_b64 v{VEW}, v[8:9]\ns_waitcnt lgkmcnt(0)\ns_barrier\nds_read_b128 {vr(EP,4)}, v{VER}\nds_read_b128 {vr(EP+4,4)}, v{VER} offset:16')
    stamp(g, 4)
    g.e(f's_waitcnt lgkmcnt(0)\nv_add_f32 v8, v{EP}, v{EP+2}\nv_add_f32 v9, v{EP+1}, v{EP+3}\nv_add_f32 v10, v{EP+4}, v{EP+6}\nv_add_f32 v11, v{EP+5}, v{EP+7}\nv_add_f32 v8, v8, v10\nv_add_f32 v9, v9, v11')
    cfma(g, 10, 11, MSR, MSI, SR, SI, PR, PI)
    HP = 224
    NTH = ' nt' if 'h' in OPT.get('nt', '') else ''
    h = (10, 11)
    for t in range(16):
        g.e(f'v_fmac_f32 v{ACR+t}, v{NLI}, v{h[1]}\nv_fmac_f32 v{ACI+t}, v{LI}, v{h[0]}')
        g.e(f'v_fmac_f32 v{ACR+t}, v{LR}, v{h[0]}\nv_fmac_f32 v{ACI+t}, v{LR}, v{h[1]}')
        h = (ACR+t, ACI+t)
        if t & 1:
            g.e(f'v_cvt_pk_bf16_f32 v{HP+(t>>1)}, v{ACR+t-1}, v{ACR+t}\nv_cvt_pk_bf16_f32 v{HP+8+(t>>1)}, -v{ACI+t-1}, -v{ACI+t}')
        if t & 7 == 7:
            i8 = t >> 3
            g.e(f'buffer_store_dwordx4 {vr(HP+4*i8,4)}, v{13+i8}, {srd(SRD_WS)}, s{sHS} offen offset:{1024*i8} sc1{NTH}', tag='hs')
            g.e(f'buffer_store_dwordx4 {vr(HP+8+4*i8,4)}, v{13+i8}, {srd(SRD_WS)}, s{sHS} offen offset:{2048+1024*i8} sc1{NTH}', tag='hs')
    stamp(g, 5)
    TR = 8; TRO = 12; TAG2 = 30
    AC2 = 64
    g.e('s_waitcnt lgkmcnt(0)')
    for k in range(4): g.e(f'v_mov_b32 v{vD+k}, v{vC+k}')
    vC = vD
    SL0 = 4 if OWN else 0
    if OWN:
        g.e(f's_and_b32 s13, s{sHS}, 0x3fff\ns_add_u32 s13, s13, {SL0*16384}\nv_add_u32 v28, s13, v13\nv_add_u32 v29, s13, v14')
    ND = opt('nd', 2); NF = opt('nf', 2 if OWN else 3)
    plan3 = []; fill = []; cq = []
    for bf in range(ND):
        fill += group_dma(c_dma(bf), 'c3'); plan3.append((nxt, bf)); nxt += 1
    gg = G(); gg.role = 'B'
    gg.e(f"""
    v_and_b32 v7, 1, v0
    v_lshlrev_b32 v3, 4, v7
    v_lshlrev_b32 v3, v3, v{DSK}
    v_bfe_u32 v4, v0, 3, 1
    v_cmp_eq_u32 vcc, v4, v{VHF}
    v_cndmask_b32 v3, 0, v3, vcc
    v_bfe_u32 v4, v0, 1, 2
    v_bfe_u32 v6, v0, 4, 1
    v_lshl_add_u32 v4, v6, 2, v4
    """)
    for r in range(8): gg.e(f'v_cmp_eq_u32 vcc, {r}, v4\nv_cndmask_b32 v{DG+r}, 0, v3, vcc')
    for s_ in range(2): gg.e(f'{MF32} {vr(AC2,16)}, {vr(XF+4*s_,4)}, {vr(DG+4*s_,4)}, {"0" if s_ == 0 else vr(AC2,16)}')
    gg.e(f"""
    v_bfe_u32 v5, v0, 1, 1
    v_xor_b32 v4, v6, v{VHF}
    v_lshl_add_u32 v4, v6, 1, v4
    v_lshlrev_b32 v4, 1, v4
    v_xor_b32 v4, v4, v5
    v_bfe_u32 v6, v0, 2, 2
    v_lshl_add_u32 v6, v4, 2, v6
    v_lshlrev_b32 v6, 4, v6
    v_lshl_add_u32 v6, v5, 10, v6
    v_lshl_add_u32 v6, v7, 3, v6
    s_mul_i32 s13, s{sKH}, 2560
    v_add_u32 v{TR}, s13, v6
    v_xor_b32 v{TR+1}, 64, v{TR}
    v_add_u32 v{TR+2}, 0x10000, v{TR}
    v_add_u32 v{TR+3}, 0x10000, v{TR+1}
    v_xor_b32 v{TRO}, 0x200, v{TR}
    v_xor_b32 v{TRO+1}, 0x200, v{TR+1}
    v_xor_b32 v{TRO+2}, 0x200, v{TR+2}
    v_xor_b32 v{TRO+3}, 0x200, v{TR+3}
    v_mov_b32 v{TAG2}, v{TAG}
    s_lshl_b32 s{sT0}, s{sW}, 11
    v_cmp_gt_u32 vcc, 10, v0
    v_cndmask_b32 v3, 0, v0, vcc
    v_lshlrev_b32 v3, 2, v3
    s_add_u32 s13, s{sM0}, 0x18000
    v_add_u32 v5, s13, v1
    v_xor_b32 v6, 0x4000, v5
    v_mul_u32_u24 v7, 20480, v{VHF}
    v_lshl_add_u32 v7, v{VP32}, 2, v7
    s_lshl_b32 s{sT0+1}, s{sRB}, 1
    s_add_u32 s{sT0+1}, s{sT0+1}, s{sKH}
    s_mul_i32 s{sT0+1}, s{sT0+1}, {32*5120}
    s_lshl_b32 s14, s{sN}, 9
    s_add_u32 s{sT0+1}, s{sT0+1}, s14
    s_lshl_b32 s14, s{sWD}, 7
    s_add_u32 s{sT0+1}, s{sT0+1}, s14
    s_add_u32 s{sT0+1}, s{sT0+1}, 2560
    s_mul_i32 s{sHB}, s{sRB}, 163840
    s_add_u32 s{sHB}, s{sHB}, s{sT0}
    s_add_u32 s{sHB}, s{sHB}, {H_OFF:#x}
    """)
    mk_srd(gg, SRD_OUT, 'out', 10485760)
    L1 = [l.strip() for l in gg.lines]
    spread(g, [L1[i:i+6] for i in range(0, len(L1), 6)], fill)
    HO = [30 + u for u in range(10)]
    if CT:
        HO = [0] + [40 + u for u in range(8)] + [18]
        for u in range(1, 10): g.e(f's_lshl_b32 s{HO[u]}, s{30+u}, 7\ns_add_u32 s{HO[u]}, s{HO[u]}, s{sHB}')
    else:
        g.e(f's_add_u32 s14, s{sHB}, 163840\ns_lshl_b32 s30, s{sROT}, 14\ns_add_u32 s30, s30, s{sHB}')
        for u in range(1, 10):
            g.e(f's_add_u32 s{30+u}, s{29+u}, {16384*STEP}\ns_cmp_ge_u32 s{30+u}, s14\ns_cselect_b32 s13, 163840, 0\ns_sub_u32 s{30+u}, s{30+u}, s13')
    g.wait_vm('hs')
    g.e('s_barrier')
    Lf = g.newlabel('Lhflag')
    g.e(f's_cmp_lg_u32 s{sW}, 0\ns_cbranch_scc1 {Lf}\ns_mov_b64 exec, 1')
    g.lines.append(f'    buffer_store_dword v{TAG}, v{ZERO}, {srd(SRD_WS)}, s{sFW} offen sc1')
    g.e('s_mov_b64 exec, -1')
    g.label(Lf)
    AF = [32, 48]
    steps = [(u, kk) for u in range(10) for kk in range(2)]
    def g2_reads(n):
        u, kk = steps[n]; fb = AF[n & 1]; sl = (u + SL0) % 6
        hi = 2*(sl >> 2); o = (sl & 3)*16384 + kk*8192
        return [f'ds_read_b64_tr_b16 {vr(fb+8*k2+4*i+2*uu,2)}, v{(TRO if i else TR)+hi+uu} offset:{o+4096*k2}' for k2 in range(2) for i in range(2) for uu in range(2)]
    def g2_mfma(n):
        u, kk = steps[n]; fb = AF[n & 1]
        order = [(k2, i) for k2 in range(2) for i in range(2)] if n < 19 else [(0, 1), (1, 1), (0, 0), (1, 0)]
        return [f'{MF32} {vr(AC2+16*i,16)}, {vr(fb+8*k2+4*i,4)}, {creg(u,2*kk+k2)}, {"0" if (n == 0 and k2 == 0 and i == 1) else vr(AC2+16*i,16)}' for k2, i in order]
    stamp(g, 6)
    if OWN:
        Lo = g.newlabel('Lown')
        g.e(f's_lshr_b32 s13, s{sWD}, 1\ns_and_b32 s14, s{sRB}, 1\ns_cmp_lg_u32 s13, s14\ns_cbranch_scc1 {Lo}')
        for i8 in range(2):
            g.e(f'ds_write_b128 v{28+i8}, {vr(HP+4*i8,4)} offset:{1024*i8}\nds_write_b128 v{28+i8}, {vr(HP+8+4*i8,4)} offset:{2048+1024*i8}')
        g.label(Lo)
    bufs = [b_ for b_ in range(ND, 3)] + [3, 4]
    bufs = bufs[max(0, len(bufs) - NF):]
    for bf in bufs:
        if nxt < 10:
            emit_items(g, group_dma(c_dma(bf), 'c3' if bf < 3 else f'cc{nxt}'))
            (plan3 if bf < 3 else cq).append((nxt, bf)); nxt += 1
    if OWN:
        assert all(bf != 2 for _, bf in plan3)
        g.e('s_waitcnt lgkmcnt(0)\ns_barrier')
        for r in g2_reads(0) + g2_reads(1): g.e(r)
    g.wait_vm('c3')
    for u, bf in plan3: c_read(u, bf)
    if OWN:
        assert LORD.index(0) < nxt - len(cq) and LORD[5:] == list(range(5, 10))
        g.e(f's_waitcnt lgkmcnt({0 if 0 in [LORD[u] for u, _ in plan3] else 4*len(plan3)})')
        for x in g2_mfma(0) + g2_mfma(1): g.e(x)
    Lh, Lhd = g.newlabel('Lhpoll'), g.newlabel('Lhdone')
    keep = list(g.vm)
    g.e(f's_cmp_lg_u32 s{sW}, 0\ns_cbranch_scc1 {Lhd}\ns_mov_b32 s15, {SPIN_MAX}')
    g.label(Lh)
    g.e(f'buffer_load_dword v4, v3, {srd(SRD_WS)}, s{sFR} offen sc1')
    g.wait_vm0()
    g.e(f'v_cmp_ne_u32 vcc, v4, v{TAG2}\ns_cbranch_vccz {Lhd}')
    g.e(f's_sub_u32 s15, s15, 1\ns_cmp_lg_u32 s15, 0\ns_cbranch_scc1 {Lh}')
    g.label(Lhd)
    g.vm = keep
    g.e('s_waitcnt lgkmcnt(0)')
    for k in range(4): g.e(f'v_add_u32 v{vA+k}, 0x18000, v{vA+k}')
    g.e('s_barrier')
    stamp(g, 7); stamp(g, 2, 'g2')
    def c_read2(u, bf): return [f'ds_read_b128 {creg(LORD[u], ks)}, v{vA + ks} offset:{(bf-3)*32768}' for ks in range(4)]
    def h_dma(u):
        out = [f's_add_u32 m0, s{sT0}, {((u + SL0) % 6)*16384}']
        out += [f'buffer_load_dwordx4 v1, {srd(SRD_WS)}, s{HO[u]} offen offset:{1024*i} sc1 lds' for i in range(2)]
        return [[(x, f'h{u}') for x in out]]
    crest = list(range(nxt, 10))
    NUP = opt('nup', 2) + OWN
    for u in range(OWN, NUP): emit_items(g, h_dma(u))
    freed = []
    if cq:
        g.wait_vm(f'cc{cq[-1][0]}')
        for cu, bf in cq:
            for r in c_read2(cu, bf): g.e(r)
            freed.append(bf)
    def c_items(bf):
        u = crest.pop(0); lst = c_dma(bf)
        its = [[(lst[0], None), (lst[1+i], f'cc{u}')] for i in range(4)]
        its[-1] += [(x, None) for x in lst[5:]]
        return u, its
    BAR = [int(x) for x in OPT.get('bar', '1,2,3,4,5,7,9' if OWN else '0,1,2,3,5,7,9').split(',')]
    hnext = NUP; cpend = []; cfly = []; cready = {}; cdone = {}
    PER = opt('per', 2)
    safe = OWN - 1
    N0 = 2*OWN
    g.wait_vm(f'h{BAR[0]}', 'lgkmcnt(0)'); g.e('s_barrier'); visible = BAR.pop(0)
    stamp(g, 3, 'g2')
    for n in range(N0, len(steps) + 1):
        u = n // 2
        rd = []; extra = []; items = []
        if n > N0: g.e('s_waitcnt lgkmcnt(0)')
        if n < len(steps):
            assert u <= visible
            for bf in freed:
                if crest:
                    cu, its = c_items(bf); cpend += [(cu, it) for it in its]; cfly.append((cu, bf))
            freed = []
            if cfly and cready.get(cfly[0][0], 99) <= n:
                cu, bf = cfly.pop(0)
                g.wait_vm(f'cc{cu}')
                extra += c_read2(cu, bf); freed.append(bf); cdone[cu] = n + 1
            budget = PER
            if hnext < 10 and hnext - 6 <= safe: items += h_dma(hnext); hnext += 1; budget -= 2
            while budget > 0 and cpend:
                cu, it = cpend.pop(0); items.append(it); budget -= 1
                if not cpend or cpend[0][0] != cu: cready[cu] = n + 2
            rd = g2_reads(n) + extra
        m = n - 1
        dobar = n + 1 < len(steps) and (n + 1) // 2 > visible
        if m < N0:
            for r in rd: g.e(r)
            emit_items(g, items)
        else:
            cu_needed = steps[m][0]
            assert cu_needed not in [x for x, _ in cfly] and cu_needed not in crest and cdone.get(cu_needed, 0) <= n, (n, cu_needed)
            RP = opt('rp2', 3)
            for q, x in enumerate(g2_mfma(m)):
                g.e(x)
                for r in (rd[RP*q:RP*q+RP] if q < 3 else rd[RP*q:]): g.e(r)
                if q == 2 and dobar:
                    assert BAR[0] < hnext - (1 if items and str(items[0][0][1]).startswith('h') else 0), (n, BAR, hnext)
                    g.wait_vm(f'h{BAR[0]}'); g.e('s_barrier'); visible = BAR.pop(0)
                    safe = (n - 1) // 2 if (n - 1) % 2 == 1 else (n - 1) // 2 - 1
                    stamp(g, 3 + (n + 1) // 2, 'g2')
                hl = (len(items) + 1) // 2
                if q >= 2: emit_items(g, items[:hl] if q == 2 else items[hl:])
    assert not cfly and not cpend and not crest and hnext == 10
    stamp(g, 8); stamp(g, 13, 'g2')
    osc = ('' if OPT.get('noosc1') else ' sc1') + (' nt' if 'o' in OPT.get('nt', '') else '')
    for q in range(4): g.e(f'ds_write_b128 v5, {vr(AC2+16+4*q,4)} offset:{1024*q}')
    g.e('s_waitcnt lgkmcnt(0)\ns_barrier')
    RA = 128
    for q in range(4): g.e(f'ds_read_b128 {vr(RA+4*q,4)}, v6 offset:{1024*q}')
    for q in range(4):
        g.e(f's_waitcnt lgkmcnt({3-q})')
        for r in range(4):
            g.e(f'v_add_f32 v{RA+4*q+r}, v{RA+4*q+r}, v{AC2+4*q+r}')
            g.e(f'buffer_store_dword v{RA+4*q+r}, v7, {srd(SRD_OUT)}, s{sT0+1} offen{osc}')
            if 4*q+r < 15: g.e(f's_add_u32 s{sT0+1}, s{sT0+1}, {5120 if r < 3 else 5*5120}')
    if DIAG:
        g.wait_vm0(); stamp(g, 9); g.e('s_nop 0' if OPT.get('grp') or OPT.get('clk') else 's_mov_b32 s94, s98'); diag_out(g, 14)
    end_spin(g, TAG2)
    g.e('s_endpgm')

def role_P(g):
    if OPT.get('pm'):
        g.e(f's_sub_u32 s6, s2, 240\ns_lshl_b32 s7, s{sW}, 13\nv_lshl_add_u32 v1, v0, 7, s7\ns_mov_b32 s55, 0x20000\ns_waitcnt lgkmcnt(0)')
        for nm in OPT['pm'].split(','):
            size = 819200 if nm[0] in 'CB' else 2621440
            per = size // 16
            g.e(f's_mul_i32 s8, s6, {per}\ns_add_u32 s52, s{P[nm]}, s8\ns_addc_u32 s53, s{P[nm]+1}, 0\ns_mov_b32 s54, {per}\ns_mov_b32 s9, 0')
            for k in range((per + 65535) // 65536):
                g.e(f'buffer_load_dword v4, v1, s[52:55], s9 offen')
                g.e('s_add_u32 s9, s9, 65536')
        if not OPT.get('pf'):
            g.e('s_waitcnt vmcnt(0)\ns_endpgm')
            return
    g.e(f"""
    s_and_b32 s13, s{sXCD}, 1
    s_lshl_b32 s13, s13, 8
    v_add_u32 v1, s13, v0
    v_mul_u32_u24 v1, 1280, v1
    s_mov_b32 s8, s{sW}
    s_waitcnt lgkmcnt(0)
    s_cmp_eq_u32 s{sIDX}, 30
    s_cselect_b32 s52, s{P['Cre']}, s{P['Cim']}
    s_cselect_b32 s53, s{P['Cre']+1}, s{P['Cim']+1}
    s_mov_b32 s54, 819200
    s_mov_b32 s55, 0x20000
    """)
    L = g.newlabel('Lpf')
    g.label(L)
    g.e(f"""
    s_mul_i32 s9, s8, 43
    s_lshr_b32 s9, s9, 8
    s_mul_i32 s10, s9, 6
    s_sub_u32 s10, s8, s10
    s_mul_i32 s10, s10, {64*1280}
    s_lshl_b32 s9, s9, 7
    s_add_u32 s10, s10, s9
    buffer_load_dword v4, v1, s[52:55], s10 offen
    s_add_u32 s8, s8, 8
    s_cmp_lt_u32 s8, {6*opt('pf', 10)}
    s_cbranch_scc1 {L}
    s_waitcnt vmcnt(0)
    s_endpgm
    """)

def main():
    g = G()
    CODEPF = ''
    if OPT.get('cpf'):
        CODEPF = f"""s_getpc_b64 s[6:7]
    s_and_b32 s6, s6, 0xffffff00
    s_cmp_ge_u32 s{sW}, NCPF
    s_cbranch_scc1 L_nocpf
    s_cmp_lg_u32 s{sIDX}, {opt('cpf', 0)}
    s_cbranch_scc1 L_nocpf
    s_lshl_b32 s8, s{sW}, 13
    v_lshl_add_u32 v2, v0, 7, s8
    v_min_u32 v2, L_exit-{NAME}_kernel, v2
    global_load_dword v255, v2, s[6:7]
L_nocpf:"""
    g.e(f'''
    s_cmp_ge_u32 s2, {NWG}
    s_cbranch_scc1 L_exit
    s_load_dwordx16 s[16:31], s[0:1], 0
    s_load_dwordx16 s[32:47], s[0:1], 64
    s_load_dwordx4 s[48:51], s[0:1], 128
    s_memrealtime s[98:99]
    s_and_b32 s{sXCD}, s2, 7
    s_lshr_b32 s{sIDX}, s2, 3
    v_lshrrev_b32 v1, 6, v0
    v_and_b32 v0, 63, v0
    v_readfirstlane_b32 s{sW}, v1
    ''')
    if opt('hfront', 0):
        import gen2_a
        g.e(f's_cmp_lt_u32 s{sIDX}, 20\ns_cbranch_scc1 L_roleB')
        if CODEPF: g.e(CODEPF)
        g.e(f's_cmp_ge_u32 s{sIDX}, 30\ns_cbranch_scc1 L_roleP')
        gen2_a.help2(g, sys.modules[__name__])
        g.e('s_branch L_roleA')
        g.label('L_roleB')
        g.vm = []
    else:
        g.e(f'''
    {CODEPF}
    s_cmp_ge_u32 s{sIDX}, 30
    s_cbranch_scc1 L_roleP
    s_cmp_ge_u32 s{sIDX}, 20
    s_cbranch_scc1 L_roleA
    ''')
    g.role = 'B'
    role_B(g)
    g.role = 'A'
    g.label('L_roleA')
    g.vm = []
    if OPT.get('noA'):
        g.e('s_endpgm')
    else:
        import gen2_a
        gen2_a.role_A(g, sys.modules[__name__])
    g.label('L_roleP')
    g.vm = []
    role_P(g)
    g.label('L_exit')
    g.e('s_endpgm')
    body, added = fix_hazards(g.lines)
    body = [l.replace('NCPF', str(opt('ncpf', 3))) for l in body]
    ref = open('cdna_kernels/%s.s.ref' % NAME).read().split('\n')
    head = [l for l in ref if l.startswith(';') and '@launch' not in l]
    out = head + [f'; @launch grid=({NWG},1,1) block=(512,1,1) lds=163840',
        '.amdgcn_target "amdgcn-amd-amdhsa--gfx950"', '.text', f'.globl {NAME}_kernel', '.p2align 8',
        f'.type {NAME}_kernel,@function', f'{NAME}_kernel:'] + body + [
        '.section .rodata,"a"', '.p2align 6', f'.amdhsa_kernel {NAME}_kernel',
        '  .amdhsa_next_free_vgpr 256', '  .amdhsa_next_free_sgpr 102', '  .amdhsa_accum_offset 256',
        '  .amdhsa_group_segment_fixed_size 0', '  .amdhsa_kernarg_size 144', '  .amdhsa_user_sgpr_count 2',
        '  .amdhsa_user_sgpr_kernarg_segment_ptr 1', '  .amdhsa_system_sgpr_workgroup_id_x 1',
        '  .amdhsa_float_denorm_mode_32 3', '.end_amdhsa_kernel', '']
    fn = OPT.get('o', 'cdna_kernels/%s.s' % NAME)
    open(fn, 'w').write('\n'.join(out))
    print('wrote', fn, 'lines', len(out), 'nops added', added)

if __name__ == '__main__':
    main()
```

```python
from asmlib import G

def help2(g, M):
    P, sW, sXCD, sIDX, opt = M.P, M.sW, M.sXCD, M.sIDX, M.opt
    H2 = opt('help2', 0)
    if H2:
        CPI = opt('cpi', 2)
        Lh = g.newlabel('Lhelp2')
        g.e(f'''
        s_sub_u32 s12, s{sIDX}, 20
        s_mul_i32 s13, s{sW}, 10
        s_add_u32 s12, s12, s13
        s_cmp_ge_u32 s12, 72
        s_cbranch_scc1 {Lh}
        v_and_b32 v253, 15, v0
        v_mul_u32_u24 v253, 1280, v253
        v_lshrrev_b32 v254, 4, v0
        v_lshl_add_u32 v253, v254, 7, v253
        s_and_b32 s13, s{sXCD}, 1
        s_mul_i32 s13, s13, 20
        s_add_u32 s13, s13, s12
        s_sub_u32 s13, s13, 32
        s_sub_u32 s14, s13, 20
        s_lshr_b32 s15, s{sXCD}, 1
        s_lshl_b32 s15, s15, 5
        s_add_u32 s15, s15, s12
        s_mov_b32 s62, 819200
        s_mov_b32 s63, 0x20000
        s_mov_b64 exec, {(1 << (16*CPI)) - 1 if CPI < 4 else -1}
        s_waitcnt lgkmcnt(0)
        s_cmp_ge_u32 s12, 52
        s_cselect_b32 s60, s{P['Bim']}, s{P['Bre']}
        s_cselect_b32 s61, s{P['Bim']+1}, s{P['Bre']+1}
        s_cselect_b32 s13, s14, s13
        s_cmp_lt_u32 s12, 32
        s_cselect_b32 s60, s{P['x']}, s60
        s_cselect_b32 s61, s{P['x']+1}, s61
        s_cselect_b32 s62, 2621440, s62
        s_cselect_b32 s13, s15, s13
        s_mul_i32 s13, s13, {16*1280}
        ''')
        for c0 in range(H2, 10, CPI):
            if opt('xrot', 0):
                g.e(f's_add_u32 s14, s81, {128*c0}\ns_cmp_ge_u32 s14, 1280\ns_cselect_b32 s15, 1280, 0\ns_sub_u32 s14, s14, s15\ns_add_u32 s14, s14, s13')
                g.lines.append(f'    buffer_load_dword v254, v253, s[60:63], s14 offen')
            else: g.lines.append(f'    buffer_load_dword v254, v253, s[60:63], s13 offen offset:{128*c0}' + M.OPT.get('hfl', '').replace('_', ' '))
        g.e('s_mov_b64 exec, -1')
        g.label(Lh)

def role_A(g, M):
    P, sp, srd, vr, mk_srd, stamp, diag_out, get_tag = M.P, M.sp, M.srd, M.vr, M.mk_srd, M.stamp, M.diag_out, M.get_tag
    sW, sXCD, sIDX = M.sW, M.sXCD, M.sIDX
    SRD_WS, SRD_OUT, SRD_DBG = M.SRD_WS, M.SRD_OUT, M.SRD_DBG
    OPT, DIAG, MF, opt = M.OPT, M.DIAG, M.MF, M.opt
    SRD_K, SRD_V, SRD_SK, SRD_Q = 52, 56, 60, 64
    sA, sTT, sCG, sCH = 6, 7, 8, 9
    sKC, sU, sD, sMK = 10, 11, 80, 82
    CPS = 4160; RS = 20480; UO = 16368; TO = 16384
    TAG, ZERO = 10, 11
    NTK = ' nt' if 'k' in OPT.get('nt', '') else ''
    NTS = ' nt' if 's' in OPT.get('nt', '') else ''
    NTQ = ' nt' if 'q' in OPT.get('nt', '') else ''
    g.c('==== role A ====')
    H2 = opt('help2', 0)
    if not opt('hfront', 0): help2(g, M)
    g.e(f'''
    s_mul_i32 s{sA}, s{sXCD}, 10
    s_add_u32 s{sA}, s{sA}, s{sIDX}
    s_sub_u32 s{sA}, s{sA}, 20
    s_and_b32 s{sTT}, s{sA}, 7
    s_lshr_b32 s{sCG}, s{sA}, 3
    s_lshl_b32 s{sCH}, s{sA}, 3
    s_add_u32 s{sCH}, s{sCH}, s{sW}
    s_mul_i32 s{sKC}, s{sW}, {RS}
    s_add_u32 s{sU}, s{sKC}, {UO}
    s_mov_b32 s{sMK}, 0xffff0000
    ''')
    g.e(f'''
    v_and_b32 v1, 15, v0
    v_lshrrev_b32 v2, 4, v0
    s_lshl_b32 s13, s{sW}, 2
    v_add_u32 v9, s13, v2
    s_lshl_b32 s13, s{sTT}, 8
    s_lshl_b32 s14, s{sW}, 5
    s_add_u32 s13, s13, s14
    v_lshrrev_b32 v3, 3, v0
    v_add_u32 v3, s13, v3
    v_mul_u32_u24 v3, 1280, v3
    v_and_b32 v4, 7, v0
    v_lshl_add_u32 v3, v4, 4, v3
    s_lshl_b32 s13, s{sCG}, 7
    v_add_u32 v3, s13, v3
    v_subrev_u32 v4, {8*1280}, v3
    s_lshl_b32 s13, s{sCG}, 9
    v_lshl_add_u32 v5, v1, 5, s13
    v_mov_b32 v{ZERO}, 0
    v_lshlrev_b32 v6, 4, v0
    s_waitcnt lgkmcnt(0)
    ''')
    stamp(g, 0)
    HELP = opt('help', 0)
    if HELP:
        ntot = 18 * (10 - HELP)
        g.e(f's_sub_u32 s12, s{sIDX}, 20\ns_lshl_b32 s12, s12, 3\ns_add_u32 s12, s12, s{sW}\nv_mul_u32_u24 v253, 1280, v0\ns_mov_b32 s63, 0x20000')
        for rep in range((ntot + 79) // 80):
            Lh = g.newlabel('Lhelp')
            if rep: g.e('s_add_u32 s12, s12, 80')
            if 80*(rep+1) > ntot: g.e(f's_cmp_ge_u32 s12, {ntot}\ns_cbranch_scc1 {Lh}')
            g.e(f'''
            s_mul_i32 s13, s12, 3641
            s_lshr_b32 s13, s13, 16
            s_mul_i32 s14, s13, 18
            s_sub_u32 s14, s12, s14
            s_cmp_ge_u32 s14, 13
            s_cselect_b32 s60, s{P['Bim']}, s{P['Bre']}
            s_cselect_b32 s61, s{P['Bim']+1}, s{P['Bre']+1}
            s_cselect_b32 s15, 13, 8
            s_sub_u32 s15, s14, s15
            s_and_b32 s64, s{sXCD}, 1
            s_mul_i32 s64, s64, 5
            s_add_u32 s15, s15, s64
            s_lshr_b32 s64, s{sXCD}, 1
            s_lshl_b32 s64, s64, 3
            s_add_u32 s64, s64, s14
            s_mov_b32 s62, 819200
            s_cmp_lt_u32 s14, 8
            s_cselect_b32 s60, s{P['x']}, s60
            s_cselect_b32 s61, s{P['x']+1}, s61
            s_cselect_b32 s62, 2621440, s62
            s_cselect_b32 s15, s64, s15
            s_mul_i32 s15, s15, {64*1280}
            s_lshl_b32 s13, s13, 7
            s_add_u32 s15, s15, s13
            ''')
            g.lines.append(f'    buffer_load_dword v254, v253, s[60:63], s15 offen offset:{128*HELP}')
            g.label(Lh)
        if opt('hbar', 1): g.e('s_barrier')
    if H2 and opt('hbar', 1): g.e('s_barrier')
    mk_srd(g, SRD_K, 'k', 2621440)
    mk_srd(g, SRD_V, 'v', 2621440)
    KR, VR, WR = 16, 38, 54
    for i in range(2): g.e(f'global_load_dwordx4 {vr(WR+4*i,4)}, v5, {sp("shk")} offset:{16*i}', tag='w')
    SENT = opt('sent', 1)
    SO = 4160
    KWK = opt('kwk', 0)
    def kvdma(v3, v4):
        g.e(f's_add_u32 m0, s{sKC}, {SO}\ns_mov_b32 exec_lo, 0\ns_mov_b32 exec_hi, 0xffffff00')
        g.e(f'buffer_load_dwordx4 v{v4}, {srd(SRD_K)}, 0 offen lds', tag='kk')
        g.e(f's_mov_b64 exec, -1\ns_add_u32 m0, s{sKC}, {SO+1024}\ns_mov_b32 s13, 0')
        for i in range(4):
            g.e(f'buffer_load_dwordx4 v{v3}, {srd(SRD_K)}, s13 offen offset:{1024*i}{NTK} lds', tag='kk')
            if i < 3: g.e(f's_add_u32 s13, s13, {8*1280-1024}')
        if opt('kvb', 0): g.e('s_barrier')
        g.e(f's_add_u32 m0, s{sKC}, {SO+5120}\ns_mov_b32 s13, 0')
        for i in range(4):
            g.e(f'buffer_load_dwordx4 v{v3}, {srd(SRD_V)}, s13 offen offset:{1024*i}{NTK} lds', tag='kv')
            if i < 3: g.e(f's_add_u32 s13, s13, {8*1280-1024}')
    AE = opt('ae', 0)
    if AE: kvdma(3, 4)
    else: g.e('v_mov_b32 v251, v3\nv_mov_b32 v252, v4')
    g.e(f'v_lshlrev_b32 v3, 10, v2\nv_lshl_add_u32 v3, v1, 3, v3\nv_add_u32 v3, s{sKC}, v3')
    mk_srd(g, SRD_SK, 'ssmk', 2621440)
    mk_srd(g, SRD_Q, 'q', 2621440)
    mk_srd(g, SRD_WS, 'ws', 0x10000000)
    mk_srd(g, SRD_OUT, 'out', 10485760)
    mk_srd(g, SRD_DBG, 'dbg', 256)
    if opt('tlb', 0):
        Lt = g.newlabel('Ltlb')
        g.e(f's_cmp_lg_u32 s{sW}, 7\ns_cbranch_scc1 {Lt}\nv_lshlrev_b32 v253, 18, v0\nv_lshlrev_b32 v254, 16, v0')
        g.lines.append(f'    buffer_load_dword v255, v253, {srd(SRD_WS)}, 0 offen')
        g.lines.append(f'    buffer_load_dword v255, v253, {srd(SRD_OUT)}, 0 offen')
        g.lines.append(f'    buffer_load_dword v255, v254, {srd(SRD_Q)}, 0 offen')
        g.lines.append(f'    buffer_load_dword v255, v254, {srd(SRD_SK)}, 0 offen')
        g.label(Lt)
    g.e(f'''
    s_lshl_b32 s13, s{sCH}, 1
    s_and_b32 s13, s13, 0xfffffffc
    s_add_u32 s14, s{P['ssmD']}, s13
    s_addc_u32 s15, s{P['ssmD']+1}, 0
    s_load_dword s{sD}, s[14:15], 0
    v_mov_b32 v12, 0
    v_mov_b32 v13, 0
    v_mov_b32 v14, 0
    v_mov_b32 v15, 0
    v_sub_u32 v8, 31, v9
    v_and_b32 v7, 7, v1
    v_xor_b32 v8, v8, v7
    v_lshlrev_b32 v8, 4, v8
    v_and_b32 v7, 1, v1
    v_lshl_add_u32 v8, v7, 11, v8
    v_lshrrev_b32 v7, 1, v1
    v_mul_u32_u24 v7, {RS}, v7
    v_add_u32 v8, v8, v7
    v_lshrrev_b32 v7, 5, v0
    v_and_b32 v9, 31, v0
    s_lshl_b32 s14, s{sW}, 1
    s_and_b32 s14, s14, 7
    v_xor_b32 v248, s14, v9
    v_lshlrev_b32 v248, 4, v248
    v_lshl_add_u32 v248, v7, 9, v248
    v_add_u32 v248, s{sKC}, v248
    v_xor_b32 v249, 16, v248
    v_lshlrev_b32 v250, 12, v7
    v_lshl_add_u32 v250, v9, 4, v250
    s_lshl_b32 s83, s{sCG}, 6
    s_lshl_b32 s14, s{sW}, 3
    s_add_u32 s83, s83, s14
    s_lshl_b32 s83, s83, 12
    s_sub_u32 s14, 7, s{sTT}
    s_lshl_b32 s14, s14, 9
    s_add_u32 s83, s83, s14
    s_lshl_b32 s81, s{sCG}, 3
    s_add_u32 s81, s81, s{sW}
    s_lshl_b32 s81, s81, 5
    s_add_u32 s81, s81, s{sTT}
    s_lshl_b32 s81, s81, 2
    s_add_u32 s81, s81, {M.FU_OFF:#x}
    s_waitcnt lgkmcnt(0)
    s_bitcmp1_b32 s{sCH}, 0
    s_cselect_b32 s13, 0, 16
    s_lshl_b32 s{sD}, s{sD}, s13
    s_and_b32 s{sD}, s{sD}, 0xffff0000
    ''')
    for r in range(4): g.e(f'v_mov_b32 v{224+r}, -1')
    NOCL = opt('nocl', 0)
    def clears():
        if NOCL: return
        g.e('s_mov_b32 s13, s83')
        for i in range(4):
            g.e(f'buffer_store_dwordx4 v[224:227], v250, {srd(SRD_WS)}, s13 offen sc1' + (' nt' if 'c' in OPT.get('nt', '') else ''), tag='clr')
            if i < 3: g.e('s_add_u32 s13, s13, 8192')
    def flag():
        get_tag(g, TAG, ZERO)
        g.e(f's_mov_b64 exec, 1\nbuffer_store_dword v{TAG}, v{ZERO}, {srd(SRD_WS)}, s81 offen sc1\ns_mov_b64 exec, -1')
    if SENT == 2 and AE != 2: clears()
    if AE == 1: g.e(f'buffer_load_dword v{TAG}, v{ZERO}, {srd(SRD_DBG)}, 0 offen sc1', tag='tag')
    if opt('ktch', 0):
        g.e(f's_lshl_b32 s13, s{sCH}, 12\nv_lshlrev_b32 v228, 6, v0')
        g.e(f'buffer_load_dword v229, v228, {srd(SRD_SK)}, s13 offen', tag='kt')
    VT, VP, VK, VZ, VQ, VO, VZR, VQT = 240, 241, 242, 243, 244, 245, 246, 247
    VP0 = 232
    g.e(f'''
    v_lshrrev_b32 v4, 1, v0
    s_lshl_b32 s13, s{sW}, 5
    v_add_u32 v4, s13, v4
    v_and_b32 v5, 1, v0
    v_mul_u32_u24 v{VQ}, 5120, v4
    v_lshl_add_u32 v{VQ}, v5, 3, v{VQ}
    s_lshl_b32 s13, s{sA}, 4
    v_add_u32 v{VQ}, s13, v{VQ}
    v_mul_u32_u24 v{VO}, 20480, v4
    v_lshl_add_u32 v{VO}, v5, 4, v{VO}
    v_mul_u32_u24 v7, {4*RS+128}, v5
    v_lshl_add_u32 v{VZR}, v4, 4, v7
    s_sub_u32 s13, s{sIDX}, 20
    s_mul_i32 s13, s13, 205
    v_add_u32 v4, s13, v4
    v_mul_u32_u24 v4, 1280, v4
    v_mul_u32_u24 v5, 156, v5
    s_mul_i32 s13, s{sXCD}, 160
    v_add3_u32 v{VQT}, v4, v5, s13
    v_add_u32 v4, 1, v1
    v_and_b32 v5, 1, v4
    v_bfe_u32 v7, v4, 1, 1
    v_lshl_add_u32 v5, v5, 1, v7
    v_mul_u32_u24 v5, {CPS}, v5
    v_and_b32 v4, 28, v4
    v_lshl_add_u32 v5, v4, 1, v5
    v_lshl_add_u32 v5, v2, 4, v5
    v_add_u32 v{VT}, s{sKC}, v5
    v_lshlrev_b32 v4, 5, v1
    v_sub_u32 v4, 480, v4
    v_lshl_add_u32 v5, v2, 4, v4
    v_add_u32 v{VP}, s{sU}, v5
    v_lshlrev_b32 v5, 3, v2
    v_sub_u32 v5, v4, v5
    v_add_u32 v5, 24, v5
    v_add_u32 v{VK}, s{sU}, v5
    v_lshlrev_b32 v4, 6, v1
    v_lshl_add_u32 v4, v2, 4, v4
    s_lshr_b32 s13, s{sW}, 2
    s_lshl_b32 s13, s13, 7
    s_add_u32 s13, s13, s{sKC}
    v_add_u32 v{VZ}, s13, v4
    s_add_u32 s13, s{sU}, 4096
    ''')
    AD = 228
    g.e(f'''
    v_lshl_add_u32 v4, v2, 3, v1
    v_sub_u32 v4, 15, v4
    s_lshr_b32 s14, s{sD}, 16
    v_mov_b32 v5, s14
    v_and_b32 v7, 1, v4
    v_lshlrev_b32 v7, 4, v7
    v_lshlrev_b32 v5, v7, v5
    v_ashrrev_i32 v4, 1, v4
    ''')
    for r in range(4): g.e(f'v_cmp_eq_u32 vcc, {r}, v4\nv_cndmask_b32 v{AD+r}, 0, v5, vcc')
    for rho in range(8): g.e(f'v_add_u32 v{VP0+rho}, {64*(56+rho)}, v{VP}\nv_min_u32 v{VP0+rho}, s13, v{VP0+rho}')
    WF = 62; KD = 200
    g.e(f's_lshl_b32 s12, s{sCH}, 12')
    g.wait_vm('w')
    KPOS = opt('kpos', 1)
    for ch in range(4):
        for tap in range(4):
            src = WR + 2*ch + (tap >> 1)
            g.e(f'v_and_b32 v{WF+tap*4+ch}, s{sMK}, v{src}' if tap & 1 else f'v_lshlrev_b32 v{WF+tap*4+ch}, 16, v{src}')
    if SENT == 2 and not AE:
        g.wait_vm('clr')
        if NOCL == 2: g.wait_vm0()
        if opt('s2t', 0):
            g.e(f'buffer_load_dword v{TAG}, v{ZERO}, {srd(SRD_DBG)}, 0 offen sc1', tag='tag')
            g.wait_vm('tag')
            if NOCL: get_tag(g, TAG, ZERO)
            else: flag()
            kvdma(251, 252)
        else:
            kvdma(251, 252)
            g.e(f'buffer_load_dword v{TAG}, v{ZERO}, {srd(SRD_DBG)}, 0 offen sc1', tag='kv')
    assert SENT == 2 and opt('s2t', 0)
    K2E = 0; ATCH = 0
    KF, VF, SF, OP = 78, 100, 116, 148
    kq = [f'buffer_load_dwordx4 v6, {srd(SRD_SK)}, s12 offen offset:{1024*i}{NTS} lds' for i in range(4)]
    g.e(f's_add_u32 m0, s{sKC}, 32')
    g.wait_vm('kk')
    for r in range(11): g.e(f'ds_read_b64 {vr(KR+2*r,2)}, v3 offset:{SO+(5+r)*128}')
    if AE == 2:
        clears()
        g.e(f'buffer_load_dword v{TAG}, v{ZERO}, {srd(SRD_DBG)}, 0 offen sc1', tag='tag')
    g.e('s_waitcnt lgkmcnt(0)')
    for cp in range(2):
        for r in range(11):
            g.e(f'v_lshlrev_b32 v{KF+2*r}, 16, v{KR+2*r+cp}\nv_and_b32 v{KF+2*r+1}, s{sMK}, v{KR+2*r+cp}')
        if KWK: g.e(kq.pop(0), tag='K0')
        for tap in (3, 2, 1, 0):
            for r in range(8):
                kk = vr(KF + 2*(r + 3 - tap), 2); w = vr(WF + tap*4 + 2*cp, 2); s = vr(SF + 16*cp + 2*r, 2)
                g.e(f'v_pk_mul_f32 {s}, {kk}, {w}' if tap == 3 else f'v_pk_fma_f32 {s}, {kk}, {w}, {s}')
            if tap == 2 and KWK: g.e(kq.pop(0), tag='K0')
    g.wait_vm('kv')
    stamp(g, 1)
    for r in range(8): g.e(f'ds_read_b64 {vr(VR+2*r,2)}, v3 offset:{SO+5120+r*128}')
    for x in kq: g.e(x, tag='K0')
    g.e('s_waitcnt lgkmcnt(0)')
    for cp in range(2):
        for r in range(8):
            g.e(f'v_lshlrev_b32 v{VF+2*r}, 16, v{VR+2*r+cp}\nv_and_b32 v{VF+2*r+1}, s{sMK}, v{VR+2*r+cp}')
        sf = SF + 16*cp
        for r in range(8): g.e(f'v_pk_mul_f32 {vr(sf+2*r,2)}, {vr(sf+2*r,2)}, {vr(VF+2*r,2)}')
        o = OP + 8*cp
        for hh in range(2):
            for d in range(4):
                g.e(f'v_cvt_pk_bf16_f32 v{o+4*hh+d}, v{sf+2*(7-2*d)+hh}, v{sf+2*(6-2*d)+hh}')
            g.e(f'ds_write_b128 v8, {vr(o+4*hh,4)} offset:{TO+(2*cp+hh)*512}')
    g.wait_vm('tag')
    if SENT == 1 or AE: flag()
    if ATCH == 2: ctouch()
    VKC = 7
    T7 = 168
    O0, O2, O1, O3 = 0, CPS, 2*CPS, 3*CPS
    assert SENT and opt('k2w', 0) and not K2E
    def kbuild():
        for i in range(4):
            g.e(f'ds_read_b128 {vr(KD+6*i,4)}, v{VKC} offset:{32+1024*i}\nds_read_b64 {vr(KD+6*i+4,2)}, v{VKC} offset:{48+1024*i}')
        for i in range(4):
            d = KD + 6*i; o = 32 + 1024*i; t = 48 + 8*i
            g.e(f's_waitcnt lgkmcnt(6)')
            for j in range(4): g.e(f'v_mov_b32 v{100+4*i+j}, v{d+1+j}')
            g.e(f'ds_write_b128 v{VKC}, {vr(100+4*i,4)} offset:{O2+o}')
            for j in range(4): g.e(f'v_alignbit_b32 v{t+j}, v{d+1+j}, v{d+j}, 16')
            for j in range(3): g.e(f'v_mov_b32 v{t+4+j}, v{t+1+j}')
            g.e(f'v_alignbit_b32 v{t+7}, v{d+5}, v{d+4}, 16')
            g.e(f'ds_write_b128 v{VKC}, {vr(t,4)} offset:{O1+o}')
            if i < 3: g.e(f'ds_write_b128 v{VKC}, {vr(t+4,4)} offset:{O3+o}')
            if NOCL and i == opt('fi', 1):
                g.wait_vm('us')
                g.e(f's_mov_b64 exec, 1\nbuffer_store_dword v{TAG}, v{ZERO}, {srd(SRD_WS)}, s81 offen sc1\ns_mov_b64 exec, -1')
        g.e(f"""
        s_mov_b64 exec, 3
        v_lshlrev_b32 v96, 16, v{KD}
        ds_write_b128 v{VKC}, v[12:15]
        ds_write_b128 v{VKC}, v[12:15] offset:{CPS}
        ds_write_b128 v{VKC}, v[12:15] offset:{2*CPS}
        ds_write_b128 v{VKC}, v[12:15] offset:{3*CPS}
        s_mov_b64 exec, 1
        ds_write_b32 v{VKC}, v96 offset:{O1+28}
        ds_write_b32 v{VKC}, v{KD} offset:{O2+28}
        ds_write_b32 v{VKC}, v96 offset:{O3+24}
        ds_write_b32 v{VKC}, v48 offset:{O3+28}
        s_mov_b64 exec, -1
        """)
    NEB = opt('neb', 0)
    g.e(f"""
    v_add_u32 v{VKC}, s{sKC}, v6
    v_and_b32 v3, 7, v0
    v_lshlrev_b32 v3, 2, v3
    s_lshl_b32 s13, s{sA}, 7
    s_add_u32 s13, s13, {M.FU_OFF:#x}
    """)
    Lb1, Lb2 = g.newlabel('Lkb'), g.newlabel('Lkb')
    if NEB:
        keep = list(g.vm)
        g.e(f's_cmp_ge_u32 s{sW}, {NEB}\ns_cbranch_scc1 {Lb1}')
        g.wait_vm('K0')
        kbuild()
        g.label(Lb1)
        g.vm = keep
    g.e('s_waitcnt lgkmcnt(0)\ns_barrier')
    RB = 16
    for i in range(4): g.e(f'ds_read_b128 {vr(RB+4*i,4)}, v{248 + (i >> 1)} offset:{TO+1024*i}')
    for i in range(4):
        g.e(f's_waitcnt lgkmcnt({3-i})')
        g.e(f'buffer_store_dwordx4 {vr(RB+4*i,4)}, v250, {srd(SRD_WS)}, s83 offen sc1', tag='us')
        if i < 3: g.e('s_add_u32 s83, s83, 8192')
    if not NOCL: g.e(f'buffer_load_dword v4, v3, {srd(SRD_WS)}, s13 offen sc1', tag='fl')
    stamp(g, 2)
    if NEB: g.e(f's_cmp_lt_u32 s{sW}, {NEB}\ns_cbranch_scc1 {Lb2}')
    if opt('bpr', 0):
        Lx = g.newlabel('Lbpr')
        g.e(f's_cmp_ge_u32 s{sW}, 4\ns_cbranch_scc1 {Lx}\ns_setprio 2')
        g.label(Lx)
    if opt('p3', 0): g.e('s_setprio 3')
    if opt('ldl', 0):
        Lx = g.newlabel('Lldl')
        g.e(f's_cmp_lt_u32 s{sW}, 4\ns_cbranch_scc1 {Lx}\ns_waitcnt vmcnt(0)')
        g.label(Lx)
    g.wait_vm('K0')
    kbuild()
    g.label(Lb2)
    g.e(f'ds_write_b128 v{VKC}, {vr(48+24+4,4)} offset:{O3+32+3072}\ns_mov_b64 exec, 1\nds_write_b128 v{VKC}, v[12:15] offset:{UO+4096}\ns_mov_b64 exec, -1')
    for rho in range(8):
        g.e(f'ds_read_b64 {vr(T7+4*rho,2)}, v{VT} offset:{64*(56+rho)}\nds_read_b64 {vr(T7+4*rho+2,2)}, v{VT} offset:{64*(56+rho)+8}')
    if NOCL: g.e(f'buffer_load_dword v4, v3, {srd(SRD_WS)}, s13 offen sc1', tag='fl')
    stamp(g, 3)
    Lp, Ld = g.newlabel('Lupoll'), g.newlabel('Ludone')
    g.e(f's_mov_b32 s15, {M.SPIN_MAX}\ns_mov_b32 m0, s{sU}\nv_add_u32 v5, s{sU}, v6')
    g.label(Lp)
    g.wait_vm0()
    g.e(f'v_cmp_ne_u32 vcc, v4, v{TAG}\ns_cbranch_vccz {Ld}')
    g.e(f'buffer_load_dword v4, v3, {srd(SRD_WS)}, s13 offen sc1')
    g.e(f's_sub_u32 s15, s15, 1\ns_cmp_lg_u32 s15, 0\ns_cbranch_scc1 {Lp}')
    g.label(Ld)
    g.e(f's_waitcnt lgkmcnt(0)\ns_mov_b32 s15, {M.SPIN_MAX}')
    stamp(g, 4)
    ACC = 16; FR = [48, 108]; QR = 200
    def rdT(rho, fb): return [f'ds_read_b64 {vr(fb+4*i+2*h,2)}, v{VT} offset:{64*(8*i+rho)+8*h}' for i in range(7) for h in range(2)]
    def rdP(rho, fb): return [f'ds_read_b128 {vr(fb+28+4*j,4)}, ' + (f'v{VP} offset:{64*(56-8*j+rho)}' if j else f'v{VP0+rho}') for j in range(8)]
    def reads(rho, fb):
        t, p = rdT(rho, fb), rdP(rho, fb)
        return t[:2] + p + t[2:]
    def mfmas(rho, fb):
        out = []
        for i in range(8):
            for j in range(8 - i):
                T = i + j
                a_ = vr(fb+4*i, 4) if i < 7 else vr(T7+4*rho, 4)
                out.append(f'{MF} {vr(ACC+4*T,4)}, {a_}, {vr(fb+28+4*j,4)}, {"0" if rho == 0 and i == 0 else vr(ACC+4*T,4)}')
        return out
    for r in rdT(0, FR[0]): g.e(r)
    g.e(f's_mov_b32 s14, {1024*1280}')
    Lu, Lud = g.newlabel('Luget'), g.newlabel('Lugot')
    if SENT and opt('upr', 0):
        Lq, Lqd = g.newlabel('Lupr'), g.newlabel('Luprd')
        g.e(f'v_lshlrev_b32 v3, 7, v3')
        g.label(Lq)
        g.e(f'buffer_load_dword v4, v3, {srd(SRD_WS)}, s12 offen offset:496 sc1')
        g.wait_vm0()
        g.e(f'v_cmp_eq_u32 vcc, -1, v4\ns_cbranch_vccz {Lqd}\ns_sub_u32 s15, s15, 1\ns_cmp_lg_u32 s15, 0\ns_cbranch_scc1 {Lq}')
        g.label(Lqd)
        g.e(f's_mov_b32 s15, {M.SPIN_MAX}')
    g.label(Lu)
    for i in range(4): g.e(f'buffer_load_dwordx4 v6, {srd(SRD_WS)}, s12 offen offset:{1024*i} sc1 lds')
    g.wait_vm0()
    if not SENT or NOCL: g.e(f's_branch {Lud}')
    for i in range(4): g.e(f'ds_read_b128 {vr(16+4*i,4)}, v5 offset:{1024*i}')
    g.e('s_waitcnt lgkmcnt(0)')
    for i in range(5): g.e(f'v_max3_u32 v{16+i}, v{16+3*i}, v{17+3*i}, v{18+3*i}')
    g.e('v_max3_u32 v16, v16, v17, v18\nv_max3_u32 v19, v19, v20, v31\nv_max_u32 v16, v16, v19')
    g.e(f'v_cmp_eq_u32 vcc, -1, v16\ns_cbranch_vccz {Lud}\ns_sub_u32 s15, s15, 1\ns_cmp_lg_u32 s15, 0\ns_cbranch_scc1 {Lu}')
    g.label(Lud)
    stamp(g, 5)
    TS = opt('ts', 4)
    FLG = 7*RS + 12448
    osc = ' ' + OPT.get('afl', '').replace('_', ' ')
    def conv_pass(pairs, first_loaded, hooks, dts, zva, seen0=()):
        I = sorted({i for i, _ in pairs if i < 7}); J = sorted({j for _, j in pairs})
        def rT(rho, fb): return [x for k, x in enumerate(rdT(rho, fb)) if k // 2 in I]
        def rP(rho, fb): return [x for k, x in enumerate(rdP(rho, fb)) if k in J]
        if not first_loaded:
            for r in rT(0, FR[0]): g.e(r)
        for r in rP(0, FR[0]): g.e(r)
        seen = set(seen0)
        for rho in range(8):
            g.e('s_waitcnt lgkmcnt(0)')
            fb = FR[rho & 1]
            rd = []
            if rho < 7:
                t, p = rT(rho+1, FR[(rho+1) & 1]), rP(rho+1, FR[(rho+1) & 1]); rd = t[:2] + p + t[2:]
            pl = list(pairs) + ([('D', T) for T in dts] if rho == 0 else [])
            if rho == 7: pl.sort(key=lambda p_: (sum(p_) not in dts, sum(p_)))
            nm = len(pl); k = 0; pend = []
            for n, (i, j) in enumerate(pl):
                T = j if i == 'D' else i + j
                a_ = vr(AD, 4) if i == 'D' else (vr(fb+4*i, 4) if i < 7 else vr(T7+4*rho, 4))
                g.e(f'{MF} {vr(ACC+4*T,4)}, {a_}, {vr(fb+28+4*j,4)}, {vr(ACC+4*T,4) if T in seen else "0"}')
                seen.add(T)
                tgt = min(len(rd), -(-len(rd) * (n + 1) // max(1, nm - 3)))
                while k < tgt: g.e(rd[k]); k += 1
                for x, tag in hooks.get((rho, n), []): g.e(x, tag=tag)
                if rho == 7 and zva is not None:
                    if T in dts and all(sum(p_) != T for p_ in pl[n+1:]): pend.append((n + 8, T))
                    while pend and pend[0][0] <= n: g.e(zw(pend.pop(0)[1], zva))
            for _, T in pend: g.e(zw(T, zva))
            assert k == len(rd)
    def zw(T, va): return f'ds_write_b128 v{va}, {vr(ACC+4*T,4)} offset:{1024*T}'
    def setflag():
        g.e(f's_lshl_b32 s13, s{sW}, 2\ns_add_u32 s13, s13, {FLG}\nv_mov_b32 v5, s13\ns_mov_b64 exec, 1\nds_write_b32 v5, v{TAG}\ns_mov_b64 exec, -1')
    def waitflags(vaddr):
        L, D = g.newlabel('Lfw'), g.newlabel('Lfwd')
        g.e(f's_mov_b32 s15, {M.SPIN_MAX*16}')
        g.label(L)
        g.e(f'ds_read_b32 v3, v{vaddr}\ns_waitcnt lgkmcnt(0)\nv_cmp_ne_u32 vcc, v3, v{TAG}\ns_cbranch_vccz {D}\ns_sleep 2\ns_sub_u32 s15, s15, 1\ns_cmp_lg_u32 s15, 0\ns_cbranch_scc1 {L}')
        g.label(D)
    def qunpack(q, t, n):
        for k in range(n):
            g.e(f'v_lshlrev_b32 v{t+4*k}, 16, v{q+2*k}\nv_and_b32 v{t+4*k+1}, s{sMK}, v{q+2*k}\nv_lshlrev_b32 v{t+4*k+2}, 16, v{q+2*k+1}\nv_and_b32 v{t+4*k+3}, s{sMK}, v{q+2*k+1}')
    def final(units, va, vb):
        for n, (zo, ro, qf) in enumerate(units):
            for e in range(4): g.e(f'ds_read_b128 {vr(72+16*n+4*e,4)}, v{va if e < 2 else vb} offset:{(e&1)*RS + zo}')
        for n, (zo, ro, qf) in enumerate(units):
            g.e(f's_lshl_b32 s13, s{sA}, 5\ns_add_u32 s13, s13, {ro*5120}\ns_waitcnt lgkmcnt({4*(len(units)-1-n)})')
            for r in range(4):
                t = qf + 4*r
                for e in range(4): g.e(f'v_mul_f32 v{t+e}, v{t+e}, v{72+16*n+4*e+r}')
                g.e(f'buffer_store_dwordx4 {vr(t,4)}, v{VO}, {srd(SRD_OUT)}, s13 offen{osc}')
                if r < 3: g.e('s_add_u32 s13, s13, 5120')
    allp = [(i, j) for i in range(8) for j in range(8 - i)]
    q2 = [(f'buffer_load_dwordx2 {vr(QR+2*r,2)}, v{VQ}, {srd(SRD_Q)}, s14 offen offset:{1280*r}', 'q') for r in range(4)]
    qt = (f'buffer_load_dword v4, v{VQT}, {srd(SRD_Q)}, 0 offen{NTQ}', 'qt')
    LL, LF = g.newlabel('LconvL'), g.newlabel('Lfin')
    g.e(f's_setprio 1\ns_cmp_ge_u32 s{sW}, 4\ns_cbranch_scc1 {LL}\ns_setprio 2')
    qt2 = (f'buffer_load_dword v4, v{VQT}, {srd(SRD_Q)}, s15 offen{NTQ}', 'qt')
    g.e(f's_mov_b32 s15, {128*1280}')
    conv_pass(allp, True, {(opt('qr', 1), 11): [qt], (opt('qr', 1), 27): [qt2]}, list(range(8)), VZ)
    stamp(g, 6)
    g.e('s_setprio 0')
    setflag()
    g.e(f's_mov_b32 s15, {512*1280}')
    for Q in range(2):
        for r in range(4): g.e(f'buffer_load_dwordx2 {vr(QR+8+8*Q+2*r,2)}, v{VQ}, {srd(SRD_Q)}, {"s15" if Q else "0"} offen offset:{1280*r}', tag='q0')
    for x, tag in q2: g.e(x, tag=tag)
    g.e(f"""
    v_and_b32 v5, 7, v0
    v_lshlrev_b32 v5, 2, v5
    v_add_u32 v5, {FLG}, v5
    v_and_b32 v8, 1, v0
    v_mul_u32_u24 v8, {4*RS-8192}, v8
    v_sub_u32 v8, v{VZR}, v8
    v_add_u32 v9, {2*RS}, v8
        """)
    g.wait_vm('q0')
    qunpack(QR + 8, 112, 8)
    g.wait_vm('q')
    g.e(f'v_add_u32 v4, {2*RS}, v{VZR}')
    qunpack(QR, 48, 4)
    waitflags(5)
    final([(0, 0, 112), (2048, 512, 128)], 8, 9)
    g.e(f's_branch {LF}')
    g.label(LL)
    g.vm = []
    XS = OPT.get('xs', 'sq')
    inX = {'tri': lambda p: sum(p) < 4, 'sq': lambda p: p[0] < 4 and p[1] < 4, 'i3': lambda p: p[0] < 4, 'r5': lambda p: p[0] < 4 and p[1] < 6}[XS]
    PX = [p for p in allp if inX(p)]; PY = [p for p in allp if not inX(p)]
    conv_pass(PX, True, {}, list(range(TS)), None)
    g.e(f's_lshl_b32 s13, s{sW}, 2\ns_add_u32 s13, s13, {FLG-16}\nv_mov_b32 v5, s13\nv_subrev_u32 v8, {4*RS-8192}, v{VZ}')
    waitflags(5)
    for T in range(TS): g.e(zw(T, 8))
    setflag()
    hk = {(2+r, 5): [q2[r]] for r in range(4)}
    for k in range(4):
        q_, t_ = QR + 2*k, 48 + 4*k
        hk[(7, 1 + 2*k)] = ([('s_waitcnt vmcnt(0)', None)] if k == 0 else []) + [(x, None) for x in (f'v_lshlrev_b32 v{t_}, 16, v{q_}', f'v_and_b32 v{t_+1}, s{sMK}, v{q_}')]
        hk[(7, 2 + 2*k)] = [(x, None) for x in (f'v_lshlrev_b32 v{t_+2}, 16, v{q_+1}', f'v_and_b32 v{t_+3}, s{sMK}, v{q_+1}')]
    hk[(7, 0)] = [(f'v_add_u32 v4, {2*RS}, v{VZR}', None)]
    conv_pass(PY, False, hk, list(range(TS, 8)), VZ, {sum(p) for p in PX})
    stamp(g, 6)
    g.label(LF)
    g.vm = []
    stamp(g, 7)
    g.e('s_waitcnt lgkmcnt(0)\ns_barrier')
    final([(4096, 1024, 48)], VZR, 4)
    if opt('wbl', 0):
        Lw = g.newlabel('Lwbl')
        g.e(f's_waitcnt vmcnt(0)\ns_barrier\ns_cmp_lg_u32 s{sW}, 0\ns_cbranch_scc1 {Lw}\nbuffer_wbl2 sc1\ns_waitcnt vmcnt(0)')
        g.label(Lw)
    if DIAG:
        g.wait_vm0(); stamp(g, 8); diag_out(g, 14)
    M.end_spin(g, TAG)
    g.e('s_endpgm')
```

```python
import sys
from asmlib import G, fix_hazards

NAME = "concat_heads__ssm_conv_h3__ssm_conv_s5__prompt"
DIAG = '--diag' in sys.argv
OPT = {a.split('=')[0][2:]: (a.split('=')[1] if '=' in a else '1') for a in sys.argv[1:] if a.startswith('--')}
def opt(n, d): return type(d)(OPT.get(n, d))

UR_OFF = 0
H_OFF = 0x400000
E_OFF = 0xA00000
FH_OFF = 0xB00000
FU_OFF = 0xC00000
DIAG_OFF = 0xD00000
SPIN_MAX = 20000
HS = opt('hs', 0)
NWG = 256 if (OPT.get('pf') or OPT.get('pm') or HS) else 240

P = dict(q=16, k=18, v=20, shk=22, ssmk=24, ssmD=26, x=28, Lre=30, Lim=32, Bre=34, Bim=36, Cre=38, Cim=40, logdt=42, Dskip=44, out=46, dbg=48, ws=50)
def sp(n): return 's[%d:%d]' % (P[n], P[n]+1)
sW, sXCD, sIDX = 3, 4, 5
SRD_WS, SRD_OUT, SRD_DBG = 68, 72, 76
def srd(b): return 's[%d:%d]' % (b, b+3)
def vr(b, n): return 'v[%d:%d]' % (b, b+n-1)
MF = 'v_mfma_f32_16x16x32_bf16'

def mk_srd(g, b, ptr, nbytes):
    if ptr == 'ws' and opt('wso', 0):
        o = opt('wso', 0) << 20
        g.e(f's_add_u32 s{b}, s{P[ptr]}, {o:#x}\ns_addc_u32 s{b+1}, s{P[ptr]+1}, 0\ns_mov_b32 s{b+2}, {nbytes-o:#x}\ns_mov_b32 s{b+3}, 0x20000')
        return
    g.e(f's_mov_b32 s{b}, s{P[ptr]}\ns_mov_b32 s{b+1}, s{P[ptr]+1}\ns_mov_b32 s{b+2}, {nbytes:#x}\ns_mov_b32 s{b+3}, 0x20000')

def stamp(g, i, grp=None):
    if OPT.get('probe') == f'{g.role}{grp or ""}{i}':
        g.e('s_memrealtime s[100:101]\ns_waitcnt lgkmcnt(0)\ns_mov_b32 s97, s100')
    if not DIAG: return
    if OPT.get('grp') != grp and not (grp is None and (i < 2 or g.role == 'A')): return
    if OPT.get('clk'):
        m = ({1: 0, 2: 1, 4: 2, 6: 3, 7: 4, 8: 5, 9: 6} if g.role == 'B' else {1: 0, 2: 1, 5: 2, 6: 3, 7: 4, 8: 5}).get(i)
        if m is None or grp is not None: return
        g.e(f's_memrealtime s[100:101]\ns_waitcnt lgkmcnt(0)\ns_mov_b32 s{84+m}, s100\ns_memtime s[100:101]\ns_waitcnt lgkmcnt(0)\ns_mov_b32 s{91+m}, s100')
        return
    op = 's_memtime' if OPT.get('cyc') else 's_memrealtime'
    g.e(f'{op} s[100:101]\ns_waitcnt lgkmcnt(0)\ns_mov_b32 s{84+i}, s100')

def diag_out(g, n):
    if not DIAG: return
    if not OPT.get('clk'): g.e('s_getreg_b32 s96, hwreg(HW_REG_XCC_ID)\ns_getreg_b32 s97, hwreg(HW_REG_HW_ID)\ns_getpc_b64 s[100:101]\ns_lshr_b64 s[100:101], s[100:101], 12\ns_mov_b32 s95, s100')
    g.e(f's_lshl_b32 s13, s2, 3\ns_add_u32 s13, s13, s{sW}\ns_lshl_b32 s13, s13, 6\ns_add_u32 s13, s13, {DIAG_OFF:#x}')
    g.e('s_mov_b64 exec, 1\nv_mov_b32 v1, 0')
    for i in range(n):
        g.e(f'v_mov_b32 v2, s{84+i}\nbuffer_store_dword v2, v1, {srd(SRD_WS)}, s13 offen offset:{4*i}')
    g.e('s_mov_b64 exec, -1')

def end_spin(g, vtag):
    pr = OPT.get('probe', '')
    if pr.startswith(g.role):
        L = g.newlabel('Lspin')
        g.e('s_waitcnt vmcnt(0)')
        if pr[1:] == 'e': g.e('s_memrealtime s[100:101]\ns_waitcnt lgkmcnt(0)\ns_mov_b32 s97, s100')
        g.e('s_add_u32 s13, s97, 2500')
        g.label(L)
        g.e(f's_memrealtime s[100:101]\ns_waitcnt lgkmcnt(0)\ns_sub_u32 s14, s100, s13\ns_cmp_lt_i32 s14, 0\ns_cbranch_scc1 {L}')
    if not OPT.get('spin'): return
    L = g.newlabel('Lspin')
    g.e(f's_waitcnt vmcnt(0)\nv_readfirstlane_b32 s13, v{vtag}\ns_add_u32 s13, s13, {int(OPT["spin"])}')
    g.label(L)
    g.e(f's_memrealtime s[100:101]\ns_waitcnt lgkmcnt(0)\ns_sub_u32 s14, s100, s13\ns_cmp_lt_i32 s14, 0\ns_cbranch_scc1 {L}')

def get_tag(g, vtag, vzero):
    keep = list(g.vm)
    L = g.newlabel('Ltag'); D = g.newlabel('Ltagd')
    g.e(f's_mov_b32 s15, {SPIN_MAX}')
    g.label(L)
    g.e(f'v_cmp_eq_u32 vcc, 0, v{vtag}\ns_cbranch_vccz {D}')
    g.e(f'buffer_load_dword v{vtag}, v{vzero}, {srd(SRD_DBG)}, 0 offen sc1')
    g.wait_vm0()
    g.e(f's_sub_u32 s15, s15, 1\ns_cmp_lg_u32 s15, 0\ns_cbranch_scc1 {L}')
    g.label(D)
    g.vm = keep

def cmul(g, dr, di, ar_, ai, br, bi):
    g.e(f'v_mul_f32 v{dr}, v{ar_}, v{br}\nv_mul_f32 v{di}, v{ar_}, v{bi}')
    g.e(f'v_fma_f32 v{dr}, -v{ai}, v{bi}, v{dr}\nv_fmac_f32 v{di}, v{ai}, v{br}')
def cfma(g, dr, di, ar_, ai, br, bi, cr, ci):
    g.e(f'v_fma_f32 v{dr}, v{ar_}, v{br}, v{cr}\nv_fma_f32 v{di}, v{ar_}, v{bi}, v{ci}')
    g.e(f'v_fma_f32 v{dr}, -v{ai}, v{bi}, v{dr}\nv_fmac_f32 v{di}, v{ai}, v{br}')

def spread(g, slots, fill):
    n = len(slots); k = len(fill); fi = 0
    for i, sl in enumerate(slots):
        for x in sl: g.e(x)
        tgt = (k * (i + 1) + n - 1) // n
        while fi < min(tgt, k):
            for ins, tag in fill[fi]: g.e(ins, tag=tag)
            fi += 1
def group_dma(lst, tag):
    items = []; cur = []
    for ins in lst:
        cur.append((ins, tag))
        if ins.startswith('buffer_'): items.append(cur); cur = []
    if cur: items[-1] += cur
    return items
def emit_items(g, items):
    for it in items:
        for ins, tag in it: g.e(ins, tag=tag)

def g1_touch(g, st, vtmp, vdst, base):
    g.e(f"""
    v_mul_u32_u24 v{vtmp}, 1280, v0
    s_mul_i32 s13, s{st}, 3641
    s_lshr_b32 s13, s13, 16
    s_mul_i32 s14, s13, 18
    s_sub_u32 s14, s{st}, s14
    s_cmp_ge_u32 s14, 13
    s_cselect_b32 s{base}, s{P['Bim']}, s{P['Bre']}
    s_cselect_b32 s{base+1}, s{P['Bim']+1}, s{P['Bre']+1}
    s_cselect_b32 s15, 13, 8
    s_sub_u32 s15, s14, s15
    s_and_b32 s{base+4}, s{sXCD}, 1
    s_mul_i32 s{base+4}, s{base+4}, 5
    s_add_u32 s15, s15, s{base+4}
    s_lshr_b32 s{base+4}, s{sXCD}, 1
    s_lshl_b32 s{base+4}, s{base+4}, 3
    s_add_u32 s{base+4}, s{base+4}, s14
    s_mov_b32 s{base+2}, 819200
    s_mov_b32 s{base+3}, 0x20000
    s_cmp_lt_u32 s14, 8
    s_cselect_b32 s{base}, s{P['x']}, s{base}
    s_cselect_b32 s{base+1}, s{P['x']+1}, s{base+1}
    s_cselect_b32 s{base+2}, 2621440, s{base+2}
    s_cselect_b32 s15, s{base+4}, s15
    s_mul_i32 s15, s15, {64*1280}
    s_lshl_b32 s13, s13, 7
    s_add_u32 s15, s15, s13
    """)
    g.lines.append(f'    buffer_load_dword v{vdst}, v{vtmp}, s[{base}:{base+3}], s15 offen')

def role_B(g):
    sQ5, sN, sC, sJ, sRB, sROT, sK = 6, 7, 8, 9, 10, 11, 12
    SRD_G1, SRD_C, SRD_X = 52, 56, 60
    sTB = 62
    sM0, sCK, sWD, sKH = 82, 83, 64, 65
    sT0 = 16
    sHS, sFW, sFR, sHB = 20, 21, 22, 23
    vD = 16
    vA, vB = 20, 24
    GA = 96
    (LR, LI, NLI, C2R, C2I, L16R, L16I, W7R, W7I, MSR, MSI, TAG, ZERO, PAT, VP32, VHF) = range(28, 44)
    ZA, ZT, LRE, LIM, VSG, VEB, LQR, LQI, WGR, WGI, PR, PI, VEW, VER = range(44, 58)
    EO, TK = 176, 184
    ACR, ACI = 64, 80
    CB = 96
    F = [208, 232]
    MF32 = 'v_mfma_f32_32x32x16_bf16'
    g.c('==== role B ====')
    ORD = OPT.get('ord', 'h6')
    def orders(name):
        if name == 'g4b': return [[g_, (g_+1)%4, 4+g_, (g_+2)%4, (g_+3)%4, 8+(g_&1), 4+(g_+1)%4, 4+(g_+2)%4, 4+(g_+3)%4, 9-(g_&1)] for g_ in range(4)]
        if name == 'g4c': return [[g_, 4+g_, (g_+1)%4, (g_+2)%4, 8+(g_&1), (g_+3)%4, 4+(g_+1)%4, 4+(g_+2)%4, 4+(g_+3)%4, 9-(g_&1)] for g_ in range(4)]
        if name == 'h4': return [[g_, (g_+1)%4, (g_+2)%4, (g_+3)%4, 4, 5, 6, 7, 8, 9] for g_ in range(4)]
        if name == 'h2': return [[g_, 1-g_, 2, 3, 4, 5, 6, 7, 8, 9] for g_ in range(2)]
        if name == 'h4b': return [[g_, 2+g_, 1-g_, 3-g_, 4, 5, 6, 7, 8, 9] for g_ in range(2)]
        if name == 'h6': return [[g_, 3+g_, (g_+1)%3, (g_+2)%3, 3+(g_+1)%3, 3+(g_+2)%3, 6, 7, 8, 9] for g_ in range(3)]
        if name == 'h6b': return [[g_, (g_+1)%3, 3+g_, (g_+2)%3, 3+(g_+1)%3, 3+(g_+2)%3, 6, 7, 8, 9] for g_ in range(3)]
        if name == 'h4m': return [[g_, (g_+1)%4, (g_+2)%4, (g_+3)%4] + [c ^ (g_ & 1) for c in range(4, 10)] for g_ in range(4)]
        if name == 'h4bm': return [[g_, 2+g_, 1-g_, 3-g_] + [c ^ g_ for c in range(4, 10)] for g_ in range(2)]
        if name == 'h2m': return [[c ^ g_ for c in range(10)] for g_ in range(2)]
        if name == 'h6m': return [[g_, 4+(g_&1), (g_+1)%4, (g_+2)%4, (g_+3)%4, 5-(g_&1)] + [c ^ (g_ & 1) for c in range(6, 10)] for g_ in range(4)]
        if name == 'h8m': return [[g_, 4+g_, (g_+1)%4, (g_+2)%4, (g_+3)%4, 4+(g_+1)%4, 4+(g_+2)%4, 4+(g_+3)%4, 8+(g_&1), 9-(g_&1)] for g_ in range(4)]
    tabs = orders(ORD); NG = len(tabs)
    modt = sum((v % NG) << (4*v) for v in range(8))
    g.e(f"""
    s_mul_i32 s{sQ5}, s{sIDX}, 52
    s_lshr_b32 s{sQ5}, s{sQ5}, 8
    s_mul_i32 s13, s{sQ5}, 5
    s_sub_u32 s14, s{sIDX}, s13
    s_lshr_b32 s{sC}, s{sXCD}, 1
    s_lshl_b32 s{sC}, s{sC}, 2
    s_add_u32 s{sC}, s{sC}, s{sQ5}
    s_and_b32 s{sJ}, s{sXCD}, 1
    s_mul_i32 s{sJ}, s{sJ}, 5
    s_add_u32 s{sJ}, s{sJ}, s14
    s_and_b32 s{sWD}, s{sW}, 3
    s_lshr_b32 s{sKH}, s{sW}, 2
    s_lshl_b32 s{sM0}, s{sW}, 12
    s_add_u32 s13, s{sQ5}, s14
    s_lshl_b32 s13, s13, 2
    s_lshr_b32 s13, {modt:#x}, s13
    s_and_b32 s13, s13, 15
    """)
    for gi, t_ in enumerate(tabs):
        assert sorted(t_) == list(range(10))
        val = sum(c << (4*i) for i, c in enumerate(t_))
        if gi == 0: g.e(f's_mov_b32 s{sTB}, {val & 0xffffffff:#x}\ns_mov_b32 s{sTB+1}, {val >> 32:#x}')
        else:
            g.e(f's_cmp_eq_u32 s13, {gi}\ns_cselect_b32 s{sTB}, {val & 0xffffffff:#x}, s{sTB}')
            if len({sum(c << (4*i) for i, c in enumerate(t2)) >> 32 for t2 in tabs}) > 1: g.e(f's_cselect_b32 s{sTB+1}, {val >> 32:#x}, s{sTB+1}')
    g.e(f"""
    v_lshrrev_b32 v{VHF}, 5, v0
    v_bfe_u32 v2, v0, 3, 2
    v_lshl_add_u32 v1, v{VHF}, 4, v2
    v_lshrrev_b32 v2, 3, v0
    s_lshl_b32 s13, s{sC}, 2
    s_add_u32 s13, s13, s{sW}
    s_lshl_b32 s14, s{sJ}, 1
    s_and_b32 s15, s{sW}, 1
    s_add_u32 s14, s14, s15
    s_cmp_lt_u32 s{sW}, 4
    s_cselect_b32 s13, s13, s14
    s_cselect_b64 vcc, -1, 0
    s_movk_i32 s66, {8*1280-1024}
    s_cselect_b32 s66, {4*1280-1024}, s66
    s_lshl_b32 s13, s13, 5
    s_lshl_b32 s67, s66, 1
    v_cndmask_b32 v1, v2, v1, vcc
    v_add_u32 v1, s13, v1
    v_mul_u32_u24 v1, 1280, v1
    v_and_b32 v3, 7, v0
    v_lshrrev_b32 v4, 4, v0
    v_xor_b32 v3, v3, v4
    v_lshlrev_b32 v3, 4, v3
    v_xor_b32 v4, 64, v3
    v_add_u32 v{vD}, v1, v3
    v_add3_u32 v{vD+1}, v1, v4, s66
    v_add_u32 v{vD+2}, s67, v{vD}
    v_add_u32 v{vD+3}, s67, v{vD+1}
    v_and_b32 v{VP32}, 31, v0
    s_lshl_b32 s13, s{sJ}, 1
    s_add_u32 s13, s13, s{sKH}
    s_lshl_b32 s13, s13, 5
    v_add_lshl_u32 v5, v{VP32}, s13, 1
    s_mov_b32 s{SRD_G1+2}, 819200
    s_mov_b32 s{SRD_G1+3}, 0x20000
    s_waitcnt lgkmcnt(0)
    """)
    stamp(g, 0)
    g.e(f"""
    s_cmp_ge_u32 s{sW}, 6
    s_cselect_b32 s{SRD_G1}, s{P['Bim']}, s{P['Bre']}
    s_cselect_b32 s{SRD_G1+1}, s{P['Bim']+1}, s{P['Bre']+1}
    s_cmp_lt_u32 s{sW}, 4
    s_cselect_b32 s{SRD_G1}, s{P['x']}, s{SRD_G1}
    s_cselect_b32 s{SRD_G1+1}, s{P['x']+1}, s{SRD_G1+1}
    s_cselect_b32 s{SRD_G1+2}, 2621440, s{SRD_G1+2}
    """)
    def g1_dma(s):
        out = [f's_bfe_u32 s{sK}, s{sTB + (s >> 3)}, {(4*(s & 7)) | (4 << 16):#x}', f's_lshl_b32 s{sK}, s{sK}, 7']
        if opt('xrot', 0): out += [f's_add_u32 s{sK}, s{sK}, s81', f's_cmp_ge_u32 s{sK}, 1280', 's_cselect_b32 s80, 1280, 0', f's_sub_u32 s{sK}, s{sK}, s80']
        out += [f's_add_u32 m0, s{sM0}, {(s & 3)*32768}']
        return out + [f'buffer_load_dwordx4 v{vD+i}, {srd(SRD_G1)}, s{sK} offen offset:{1024*i} lds' for i in range(4)]
    if opt('btch', 0):
        g.e(f's_mul_i32 s80, s{sW}, 20\ns_add_u32 s80, s80, s{sIDX}')
        g1_touch(g, 80, 200, 201, 68)
        if opt('btch', 0) == 2: g.e('s_barrier')
        if opt('btch', 0) == 3: g.e('s_waitcnt vmcnt(0)')
    for ins in g1_dma(0): g.e(ins, tag='g0')
    for ins in g1_dma(1): g.e(ins, tag='g1')
    g.e(f'global_load_ushort v{LRE}, v5, {sp("Lre")}\nglobal_load_ushort v{LIM}, v5, {sp("Lim")}\nglobal_load_ushort v{ZA}, v5, {sp("logdt")}', tag='par')
    mk_srd(g, SRD_DBG, 'dbg', 256)
    g.e(f'v_mov_b32 v{ZERO}, 0')
    Ln = g.newlabel('Lnon')
    g.e(f's_or_b32 s13, s{sIDX}, s{sW}\ns_cmp_lg_u32 s13, 0\ns_cbranch_scc1 {Ln}')
    g.e(f's_or_b32 s14, s98, 1\nv_mov_b32 v6, s14\nv_mov_b32 v7, 0\ns_mov_b64 exec, 1')
    g.lines.append(f'    buffer_atomic_cmpswap v[6:7], v{ZERO}, {srd(SRD_DBG)}, 0 offen sc1')
    g.e('s_mov_b64 exec, -1')
    g.label(Ln)
    g.e(f"""
    v_bfe_u32 v2, v0, 1, 3
    v_xor_b32 v1, v{VHF}, v2
    v_lshlrev_b32 v1, 4, v1
    v_lshl_add_u32 v{PAT}, v{VP32}, 7, v1
    s_lshl_b32 s13, s{sWD}, 12
    s_lshl_b32 s14, s{sKH}, 12
    s_add_u32 s14, s14, 16384
    v_add_u32 v{GA}, s13, v{PAT}
    v_add_u32 v{GA+8}, s14, v{PAT}
    """)
    for ks in range(1, 4): g.e(f'v_xor_b32 v{GA+ks}, {32*ks}, v{GA}\nv_xor_b32 v{GA+8+ks}, {32*ks}, v{GA+8}')
    for ks in range(4): g.e(f'v_add_u32 v{GA+4+ks}, 0x10000, v{GA+ks}\nv_add_u32 v{GA+12+ks}, 0x10000, v{GA+8+ks}')
    MAPC = f'''s_and_b32 s13, s{sXCD}, 1
    s_lshr_b32 s14, s{sIDX}, 3
    s_mul_i32 s{sN}, s13, 3
    s_add_u32 s{sN}, s{sN}, s14
    s_and_b32 s15, s{sIDX}, 7
    s_lshl_b32 s13, s13, 2
    s_add_u32 s13, s13, s15
    s_cmp_ge_u32 s{sIDX}, 16
    s_cselect_b32 s{sN}, 2, s{sN}
    s_cselect_b32 s13, s13, s15
    s_cselect_b32 s{sROT}, 10, 5
    s_lshr_b32 s{sRB}, s{sXCD}, 1
    s_lshl_b32 s{sRB}, s{sRB}, 3
    s_add_u32 s{sRB}, s{sRB}, s13
    s_mul_i32 s{sROT}, s{sROT}, s15
    s_lshr_b32 s{sROT}, s{sROT}, 2
    s_mul_i32 s14, s14, 3
    s_add_u32 s{sROT}, s{sROT}, s14''' if opt('map', 2) == 2 else f'''s_mul_i32 s13, s{sQ5}, 5
    s_sub_u32 s{sN}, s{sIDX}, s13
    s_lshl_b32 s{sRB}, s{sXCD}, 2
    s_add_u32 s{sRB}, s{sRB}, s{sQ5}
    s_add_u32 s13, s13, 1
    s_lshr_b32 s13, s13, 1
    s_lshl_b32 s{sROT}, s{sN}, 1
    s_add_u32 s{sROT}, s{sROT}, s13'''
    OWN = opt('own', 1)
    if OWN:
        MAPC = f'''s_mul_i32 s13, s{sQ5}, 4
    s_sub_u32 s13, s{sIDX}, s13
    s_sub_u32 s14, s13, 5
    s_cmp_ge_u32 s13, 5
    s_cselect_b32 s13, s14, s13
    s_and_b32 s15, s{sXCD}, 1
    s_mul_i32 s{sN}, s15, 3
    s_and_b32 s14, s13, 1
    s_add_u32 s{sN}, s{sN}, s14
    s_lshr_b32 s14, s13, 1
    s_cmp_eq_u32 s13, 4
    s_cselect_b32 s{sN}, 2, s{sN}
    s_cselect_b32 s14, s15, s14
    s_lshl_b32 s{sRB}, s{sC}, 1
    s_add_u32 s{sRB}, s{sRB}, s14
    s_mov_b32 s{sROT}, s{sJ}'''
    STEP = opt('step', 3) if OWN else 1
    g.e(f"""
    {MAPC}
    s_sub_u32 s13, s{sROT}, 10
    s_cmp_ge_u32 s{sROT}, 10
    s_cselect_b32 s{sROT}, s13, s{sROT}
    {"s_mov_b32 s%d, 0" % sROT if OPT.get('rot0') else ""}
    s_lshl_b32 s{sCK}, s{sROT}, 7
    s_cmp_ge_u32 s{sW}, 4
    s_cselect_b32 s{SRD_C}, s{P['Cim']}, s{P['Cre']}
    s_cselect_b32 s{SRD_C+1}, s{P['Cim']+1}, s{P['Cre']+1}
    s_mov_b32 s{SRD_C+2}, 819200
    s_mov_b32 s{SRD_C+3}, 0x20000
    s_lshl_b32 s13, s{sN}, 7
    s_lshl_b32 s14, s{sWD}, 5
    s_add_u32 s13, s13, s14
    v_lshrrev_b32 v1, 3, v0
    v_add_u32 v1, s13, v1
    v_mul_u32_u24 v1, 1280, v1
    v_add_u32 v60, v1, v3
    v_add_u32 v61, v1, v4
    v_add_u32 v61, {8*1280-1024}, v61
    v_add_u32 v62, {16*1280-2048}, v60
    v_add_u32 v63, {16*1280-2048}, v61
    s_lshl_b32 s13, s{sWD}, 1
    v_add_u32 v{VSG}, s13, v{VHF}
    s_mul_i32 s13, s{sKH}, 4608
    s_add_u32 s13, s13, 0x20000
    v_mul_u32_u24 v{VER}, 144, v{VP32}
    v_add_u32 v{VER}, s13, v{VER}
    v_lshl_add_u32 v{VEW}, v{VSG}, 4, v{VER}
    s_lshl_b32 s13, s{sJ}, 14
    s_lshl_b32 s14, s{sKH}, 9
    s_add_u32 s13, s13, s14
    s_add_u32 s13, s13, {E_OFF:#x}
    v_lshl_add_u32 v{VEB}, v{VP32}, 4, s13
    """)
    CT = opt('ct', 1) and OWN
    if CT:
        perms = [[0,1,2,3,4,5,6,7,8,9], [2,3,0,1,6,7,4,5,9,8], [1,0,3,2,5,4,8,9,6,7]]
        vals = [sum(c << (4*i) for i, c in enumerate(p_)) for p_ in perms]
        g.e(f's_mov_b32 s14, {vals[0] & 0xffffffff:#x}\ns_mov_b32 s15, {vals[0] >> 32:#x}')
        g.e(f's_cmp_eq_u32 s{sN}, 2\ns_cselect_b32 s14, {vals[2] & 0xffffffff:#x}, s14\ns_cselect_b32 s15, {vals[2] >> 32:#x}, s15')
        g.e(f's_cmp_eq_u32 s{sN}, 1\ns_cselect_b32 s14, {vals[1] & 0xffffffff:#x}, s14\ns_cselect_b32 s15, {vals[1] >> 32:#x}, s15')
        g.e(f's_cmp_eq_u32 s{sN}, 4\ns_cselect_b32 s14, {vals[1] & 0xffffffff:#x}, s14\ns_cselect_b32 s15, {vals[1] >> 32:#x}, s15')
        g.e(f's_lshl_b32 s30, s{sJ}, 7')
        for u in range(1, 10):
            g.e(f's_and_b32 s13, s14, 15\ns_cmp_eq_u32 s13, s{sJ}\ns_cselect_b32 s13, 4, 0\ns_lshr_b64 s[14:15], s[14:15], s13')
            g.e(f's_and_b32 s13, s14, 15\ns_lshl_b32 s{30+u}, s13, 7\ns_lshr_b64 s[14:15], s[14:15], 4')
    LORD = [int(x) for x in OPT.get('lord', '1,2,3,4,0,5,6,7,8,9').split(',')] if CT else list(range(10))
    lpos = [0]
    vC = 60
    DSK, VXF = 58, 59
    SRD_X = 24
    mk_srd(g, SRD_X, 'x', 2621440)
    g.e(f"""
    s_lshl_b32 s{sT0+2}, s{sW}, 11
    s_add_u32 s{sT0+2}, s{sT0+2}, 0x23000
    v_lshlrev_b32 v{VXF}, 6, v{VP32}
    v_lshl_add_u32 v{VXF}, v{VHF}, 4, v{VXF}
    v_add_u32 v{VXF}, s{sT0+2}, v{VXF}
    s_lshl_b32 s13, s{sRB}, 6
    s_lshl_b32 s14, s{sKH}, 5
    s_add_u32 s13, s13, s14
    v_lshrrev_b32 v14, 2, v0
    v_add_u32 v14, s13, v14
    v_mul_u32_u24 v14, 1280, v14
    v_and_b32 v15, 3, v0
    v_lshl_add_u32 v14, v15, 4, v14
    s_lshl_b32 s13, s{sN}, 8
    s_lshl_b32 s14, s{sWD}, 6
    s_add_u32 s13, s13, s14
    v_add_u32 v14, s13, v14
    s_movk_i32 s{sT0+3}, {16*1280-1024}
    v_lshl_add_u32 v15, v{VP32}, 1, s13
    """)
    XE = opt('xe', 1)
    xitems = [[(f's_mov_b32 m0, s{sT0+2}', None), (f'buffer_load_dwordx4 v14, {srd(SRD_X)}, 0 offen lds', 'xd'), (f'global_load_ushort v{DSK}, v15, {sp("Dskip")}', 'xd')],
              [(f'buffer_load_dwordx4 v14, {srd(SRD_X)}, s{sT0+3} offen offset:1024 lds', 'xd')]]
    mk_srd(g, SRD_WS, 'ws', 0x10000000)
    def power(gg, dr, di, n):
        gg.e(f"""
        v_mul_f32 v11, {n}, v{ZA}
        v_mul_f32 v12, {n}, v{ZT}
        v_exp_f32 v11, v11
        v_fract_f32 v12, v12
        v_cos_f32 v{dr}, v12
        v_sin_f32 v{di}, v12
        v_mul_f32 v{dr}, v11, v{dr}
        v_mul_f32 v{di}, v11, v{di}
        """)
    gp = G(); gp.role = 'B'
    gp.e(f"""
    v_lshlrev_b32 v{LRE}, 16, v{LRE}
    v_lshlrev_b32 v{LIM}, 16, v{LIM}
    v_lshlrev_b32 v10, 16, v{ZA}
    v_mul_f32 v10, 0x3fb8aa3b, v10
    v_exp_f32 v10, v10
    v_cvt_pk_bf16_f32 v10, v10, v10
    v_lshlrev_b32 v10, 16, v10
    v_mul_f32 v{ZA}, v10, v{LRE}
    v_mul_f32 v{ZT}, v10, v{LIM}
    v_mul_f32 v{ZA}, 0x3fb8aa3b, v{ZA}
    v_mul_f32 v{ZT}, 0.15915494, v{ZT}
    v_lshlrev_b32 v13, 4, v{VSG}
    v_cvt_f32_u32 v13, v13
    v_sub_f32 v13, 0x42e00000, v13
    """)
    power(gp, LR, LI, '1.0')
    gp.e(f'v_sub_f32 v{NLI}, 0, v{LI}')
    power(gp, W7R, W7I, 'v13')
    par1 = [l.strip() for l in gp.lines]

    def c_dma(bf):
        out = [f's_add_u32 m0, s{sM0}, {bf*32768}']
        if CT:
            u = LORD[lpos[0]]; lpos[0] += 1
            return out + [f'buffer_load_dwordx4 v{vC+i}, {srd(SRD_C)}, s{30+u} offen offset:{1024*i} lds' for i in range(4)]
        out += [f'buffer_load_dwordx4 v{vC+i}, {srd(SRD_C)}, s{sCK} offen offset:{1024*i} lds' for i in range(4)]
        return out + [f's_add_u32 s{sCK}, s{sCK}, {128*STEP}', f's_cmp_ge_u32 s{sCK}, 1280', f's_cselect_b32 s66, 1280, 0', f's_sub_u32 s{sCK}, s{sCK}, s66']
    def creg(u, ks): return vr(CB + 16*u + 4*ks, 4)
    def c_read(u, bf):
        for ks in range(4): g.e(f'ds_read_b128 {creg(LORD[u], ks)}, v{(vB if bf >= 2 else vA) + ks} offset:{(bf&1)*32768}')

    def g1_reads(n):
        s, hh = n >> 1, n & 1; fb = F[n & 1]; sb = s & 3; hi = 4 if sb >= 2 else 0; o = (sb & 1) * 32768
        out = []
        if OPT.get('nords'): return out
        for k2 in range(2):
            ks = 2*hh + k2; b = fb + 12*k2
            out += [f'ds_read_b128 {vr(b,4)}, v{GA+hi+ks} offset:{o}', f'ds_read_b128 {vr(b+4,4)}, v{GA+8+hi+ks} offset:{o}', f'ds_read_b128 {vr(b+8,4)}, v{GA+8+hi+ks} offset:{o+8192}']
        return out
    def g1_mfma(n):
        fb = F[n & 1]
        if OPT.get('nomf'): return ['s_nop 0'] * 4
        return [f'{MF32} {vr(acc,16)}, {vr(fb+12*k2,4)}, {vr(fb+12*k2+4+4*part,4)}, {"0" if n == 0 and k2 == 0 else vr(acc,16)}'
                for k2 in range(2) for part, acc in ((0, ACR), (1, ACI))]
    NC1 = opt('nc1', 2)
    cplan = []
    stamp(g, 1)
    g.wait_vm('g0'); g.e('s_barrier')
    stamp(g, 2, 'g1')
    for r in g1_reads(0): g.e(r)
    queue = group_dma(g1_dma(2), 'g2') + group_dma(g1_dma(3), 'g3')
    emit_items(g, queue[:2]); queue = queue[2:]
    PF = opt('pfs', 14)
    for n in range(20):
        s = n >> 1
        g.e('s_waitcnt lgkmcnt(0)')
        rd = g1_reads(n+1) if n < 19 else []
        fillv = []
        if PF <= n < PF + 4: q4 = (len(par1) + 3) // 4; fillv = par1[(n-PF)*q4:(n-PF+1)*q4]
        for q, m in enumerate(g1_mfma(n)):
            g.e(m)
            for r in rd[2*q:2*q+2]: g.e(r)
            if q == 2 and n % 2 == 0 and s < 9:
                g.wait_vm(f'g{s+1}'); g.e('s_barrier')
                stamp(g, 3 + s, 'g1')
                if s >= 1 and s + 3 <= 9: queue += group_dma(g1_dma(s+3)[:(4 if OPT.get('nodma') else 99)], f'g{s+3}')
                if s == 7 and XE: queue += xitems
                if s >= 7 and len(cplan) < NC1 and s >= opt('cs0', 7):
                    queue += group_dma(c_dma((s-1) & 3), 'c1'); cplan.append((len(cplan), (s-1) & 3))
                if s == 2: queue[0] = [(f'buffer_load_dword v{TAG}, v{ZERO}, {srd(SRD_DBG)}, 0 offen sc1', 'tag')] + queue[0]
            k4 = (len(fillv) + 3) // 4
            for x in fillv[q*k4:(q+1)*k4]: g.e(x)
            if (q in (1, 3) or ((n < 3 or n > 14) and q == 0)) and queue: emit_items(g, [queue.pop(0)])
    assert not queue and g.vmN('par') is None and g.vmN('tag') is None
    get_tag(g, TAG, ZERO)
    stamp(g, 2); stamp(g, 12, 'g1')
    h = (ACR, ACI); pp = [(12, 13), (8, 9)]
    for t in range(1, 16):
        d = pp[t & 1]
        g.e(f'v_fma_f32 v{d[0]}, v{NLI}, v{h[1]}, v{ACR+t}\nv_fma_f32 v{d[1]}, v{LI}, v{h[0]}, v{ACI+t}')
        g.e(f'v_fmac_f32 v{d[0]}, v{LR}, v{h[0]}\nv_fmac_f32 v{d[1]}, v{LR}, v{h[1]}')
        h = d
    cmul(g, 10, 11, 8, 9, W7R, W7I)
    g.e(f'ds_write_b128 v{VEW}, v[8:11]\ns_waitcnt lgkmcnt(0)\ns_barrier')
    EV = 208
    for k in range(8): g.e(f'ds_read_b128 {vr(EV+4*k,4)}, v{VER} offset:{16*k}')
    Lp = g.newlabel('Lpub')
    g.e(f"""
    s_cmp_lg_u32 s{sWD}, 0
    s_cbranch_scc1 {Lp}
    s_lshl_b32 s13, s{sC}, 10
    v_mov_b32 v9, v{TAG}
    v_mov_b32 v11, v{TAG}
    s_waitcnt lgkmcnt(0)
    v_add_f32 v8, v{EV+2}, v{EV+6}
    v_add_f32 v10, v{EV+3}, v{EV+7}
    v_add_f32 v1, v{EV+10}, v{EV+14}
    v_add_f32 v2, v{EV+11}, v{EV+15}
    v_add_f32 v12, v{EV+18}, v{EV+22}
    v_add_f32 v13, v{EV+19}, v{EV+23}
    v_add_f32 v5, v{EV+26}, v{EV+30}
    v_add_f32 v6, v{EV+27}, v{EV+31}
    v_add_f32 v8, v8, v1
    v_add_f32 v10, v10, v2
    v_add_f32 v12, v12, v5
    v_add_f32 v13, v13, v6
    v_add_f32 v8, v8, v12
    v_add_f32 v10, v10, v13
    s_mov_b32 exec_hi, 0
    """)
    g.lines.append(f'    buffer_store_dwordx4 v[8:11], v{VEB}, {srd(SRD_WS)}, s13 offen sc1')
    g.e('s_mov_b64 exec, -1')
    g.label(Lp)
    stamp(g, 3)
    g.e(f"""
    v_add_u32 v{vA}, s{sM0}, v{PAT}
    v_xor_b32 v{vA+1}, 32, v{vA}
    v_xor_b32 v{vA+2}, 64, v{vA}
    v_xor_b32 v{vA+3}, 96, v{vA}
    v_add_u32 v{vB}, 0x10000, v{vA}
    v_add_u32 v{vB+1}, 0x10000, v{vA+1}
    v_add_u32 v{vB+2}, 0x10000, v{vA+2}
    v_add_u32 v{vB+3}, 0x10000, v{vA+3}
    """)
    if not XE: emit_items(g, xitems)
    free = [b_ for b_ in range(4) if b_ not in [x[1] for x in cplan]]
    NE = opt('ne', 2); assert NE <= len(free)
    nxt = len(cplan); plan2 = []; fill = []
    for bf in free[:NE]:
        fill += group_dma(c_dma(bf), 'c2'); plan2.append((nxt, bf)); nxt += 1
    g.e(f's_lshl_b32 s13, s{sWD}, 2\ns_sub_u32 s13, s{sC}, s13\ns_sub_u32 s13, s13, 1\nv_sub_u32 v13, s13, v{VHF}\nv_mov_b32 v12, 0x80000000')
    for k in range(2):
        g.e(f'v_lshl_add_u32 v{EO+k}, v13, 10, v{VEB}\nv_cmp_le_i32 vcc, 0, v13\nv_cndmask_b32 v{EO+k}, v12, v{EO+k}, vcc\nv_cndmask_b32 v{TK+k}, 0, v{TAG}, vcc')
        if k < 1: g.e('v_subrev_u32 v13, 2, v13')
    gg = G(); gg.role = 'B'
    gg.e(f"""
    v_add_f32 v1, -1.0, v{LR}
    v_mul_f32 v2, v{LRE}, v{LRE}
    v_fmac_f32 v2, v{LIM}, v{LIM}
    v_rcp_f32 v2, v2
    v_mul_f32 v13, v1, v{LRE}
    v_fmac_f32 v13, v{LI}, v{LIM}
    v_mul_f32 v14, v{LI}, v{LRE}
    v_fma_f32 v14, -v1, v{LIM}, v14
    v_add_f32 v2, v2, v2
    v_mul_f32 v{C2R}, v13, v2
    v_mul_f32 v{C2I}, v14, v2
    v_lshlrev_b32 v13, 4, v{VSG}
    v_cvt_f32_u32 v13, v13
    """)
    power(gg, L16R, L16I, '0x41800000')
    power(gg, 14, 15, 'v13')
    cmul(gg, MSR, MSI, 14, 15, C2R, C2I)
    NK = 2
    gg.e(f's_lshl_b32 s13, s{sWD}, 2\nv_add_u32 v15, s13, v{VHF}\nv_lshlrev_b32 v13, 7, v15\nv_cvt_f32_u32 v13, v13')
    power(gg, WGR, WGI, 'v13')
    gg.e('v_add_f32 v13, 0x43800000, v13')
    power(gg, LQR, LQI, 'v13')
    gg.e(f's_lshl_b32 s13, s{sKH}, 10\ns_add_u32 s13, s13, 0x22400\nv_lshl_add_u32 v{VER}, v{VP32}, 5, s13\ns_lshl_b32 s13, s{sWD}, 3\nv_add_u32 v{VEW}, s13, v{VER}')
    gg.e(f's_waitcnt lgkmcnt(0)\nv_mov_b32 v14, 0\nv_mov_b32 v15, 0')
    cur = (EV, EV+1)
    for k in range(7):
        if k > 0:
            d = (1, 2) if k & 1 else (5, 6)
            cfma(gg, d[0], d[1], L16R, L16I, cur[0], cur[1], EV+4*k, EV+4*k+1); cur = d
        gg.e(f'v_cmp_eq_u32 vcc, {k+1}, v{VSG}\nv_cndmask_b32 v14, v14, v{cur[0]}, vcc\nv_cndmask_b32 v15, v15, v{cur[1]}, vcc')
    cmul(gg, PR, PI, 14, 15, C2R, C2I)
    L1 = [l.strip() for l in gg.lines]
    spread(g, [L1[i:i+8] for i in range(0, len(L1), 8)], fill)
    EP = 192
    def epoll(tag=None):
        for k in range(2): g.e(f'buffer_load_dwordx4 {vr(EP+4*k,4)}, v{EO+k}, {srd(SRD_WS)}, 0 offen sc1', tag=tag)
    Lpoll, Lchk, Ldone = g.newlabel('Lepoll'), g.newlabel('Lechk'), g.newlabel('Ledone')
    epoll('ep')
    for t in range(16):
        tt = 6 + (t & 1)
        g.e(f'v_mul_f32 v{tt}, v{C2I}, v{ACI+t}\nv_mul_f32 v{ACI+t}, v{C2R}, v{ACI+t}\nv_fmac_f32 v{ACI+t}, v{C2I}, v{ACR+t}\nv_fma_f32 v{ACR+t}, v{C2R}, v{ACR+t}, -v{tt}')
    g.e(f"""
    v_lshlrev_b32 v1, 4, v0
    v_and_b32 v2, 15, v0
    v_mul_u32_u24 v13, 24, v{VHF}
    v_xor_b32 v13, v13, v2
    v_lshlrev_b32 v13, 4, v13
    v_bfe_u32 v2, v0, 4, 1
    v_lshl_add_u32 v13, v2, 12, v13
    v_xor_b32 v14, 64, v13
    s_lshr_b32 s13, s{sWD}, 1
    s_lshl_b32 s14, s{sC}, 1
    s_add_u32 s13, s13, s14
    s_mul_i32 s13, s13, 10
    s_add_u32 s13, s13, s{sJ}
    s_lshl_b32 s{sHS}, s13, 14
    s_lshl_b32 s13, s{sKH}, 13
    s_add_u32 s{sHS}, s{sHS}, s13
    s_and_b32 s13, s{sWD}, 1
    s_lshl_b32 s13, s13, 9
    s_add_u32 s{sHS}, s{sHS}, s13
    s_add_u32 s{sHS}, s{sHS}, {H_OFF:#x}
    s_lshl_b32 s14, s{sC}, 5
    s_add_u32 s14, s14, s{sJ}
    s_lshl_b32 s{sFW}, s14, 2
    s_add_u32 s{sFW}, s{sFW}, {FH_OFF:#x}
    s_lshr_b32 s{sFR}, s{sRB}, 1
    s_lshl_b32 s{sFR}, s{sFR}, 7
    s_add_u32 s{sFR}, s{sFR}, {FH_OFF:#x}
    s_mov_b32 s15, {SPIN_MAX}
    """)
    g.wait_vm('c2' if plan2 else ('c1' if cplan and XE else 'xd'))
    XF, DG = 244, 208
    assert max([0] + [LORD[u] for u, _ in cplan + plan2]) <= 4
    for u, bf in cplan + plan2: c_read(u, bf)
    for s_ in range(2): g.e(f'ds_read_b128 {vr(XF+4*s_,4)}, v{VXF} offset:{32*s_}')
    g.e(f's_branch {Lchk}')
    g.label(Lpoll)
    epoll()
    g.label(Lchk)
    g.wait_vm0()
    g.e(f'v_xor_b32 v8, v{TK}, v{EP+1}\nv_xor_b32 v9, v{TK}, v{EP+3}\nv_xor_b32 v10, v{TK+1}, v{EP+5}\nv_xor_b32 v11, v{TK+1}, v{EP+7}\nv_or3_b32 v8, v8, v9, v10')
    g.e(f'v_or_b32 v8, v8, v11\nv_cmp_ne_u32 vcc, 0, v8\ns_cbranch_vccz {Ldone}\ns_sub_u32 s15, s15, 1\ns_cmp_lg_u32 s15, 0\ns_cbranch_scc1 {Lpoll}')
    g.label(Ldone)
    SR, SI = 8, 9
    cmul(g, 10, 11, WGR, WGI, EP, EP+2)
    cfma(g, SR, SI, LQR, LQI, EP+4, EP+6, 10, 11)
    sw = 'v_permlane32_swap_b32'
    g.e(f'v_mov_b32 v10, v{SR}\nv_mov_b32 v11, v{SI}\n{sw} v10, v{SR}\n{sw} v11, v{SI}\nv_add_f32 v{SR}, v{SR}, v10\nv_add_f32 v{SI}, v{SI}, v11')
    g.e(f'ds_write_b64 v{VEW}, v[8:9]\ns_waitcnt lgkmcnt(0)\ns_barrier\nds_read_b128 {vr(EP,4)}, v{VER}\nds_read_b128 {vr(EP+4,4)}, v{VER} offset:16')
    stamp(g, 4)
    g.e(f's_waitcnt lgkmcnt(0)\nv_add_f32 v8, v{EP}, v{EP+2}\nv_add_f32 v9, v{EP+1}, v{EP+3}\nv_add_f32 v10, v{EP+4}, v{EP+6}\nv_add_f32 v11, v{EP+5}, v{EP+7}\nv_add_f32 v8, v8, v10\nv_add_f32 v9, v9, v11')
    cfma(g, 10, 11, MSR, MSI, SR, SI, PR, PI)
    HP = 224
    NTH = ' nt' if 'h' in OPT.get('nt', '') else ''
    h = (10, 11)
    for t in range(16):
        g.e(f'v_fmac_f32 v{ACR+t}, v{NLI}, v{h[1]}\nv_fmac_f32 v{ACI+t}, v{LI}, v{h[0]}')
        g.e(f'v_fmac_f32 v{ACR+t}, v{LR}, v{h[0]}\nv_fmac_f32 v{ACI+t}, v{LR}, v{h[1]}')
        h = (ACR+t, ACI+t)
        if t & 1:
            g.e(f'v_cvt_pk_bf16_f32 v{HP+(t>>1)}, v{ACR+t-1}, v{ACR+t}\nv_cvt_pk_bf16_f32 v{HP+8+(t>>1)}, -v{ACI+t-1}, -v{ACI+t}')
        if t & 7 == 7:
            i8 = t >> 3
            g.e(f'buffer_store_dwordx4 {vr(HP+4*i8,4)}, v{13+i8}, {srd(SRD_WS)}, s{sHS} offen offset:{1024*i8} sc1{NTH}', tag='hs')
            g.e(f'buffer_store_dwordx4 {vr(HP+8+4*i8,4)}, v{13+i8}, {srd(SRD_WS)}, s{sHS} offen offset:{2048+1024*i8} sc1{NTH}', tag='hs')
    stamp(g, 5)
    TR = 8; TRO = 12; TAG2 = 30
    AC2 = 64
    g.e('s_waitcnt lgkmcnt(0)')
    for k in range(4): g.e(f'v_mov_b32 v{vD+k}, v{vC+k}')
    vC = vD
    SL0 = 4 if OWN else 0
    if OWN:
        g.e(f's_and_b32 s13, s{sHS}, 0x3fff\ns_add_u32 s13, s13, {SL0*16384}\nv_add_u32 v28, s13, v13\nv_add_u32 v29, s13, v14')
    ND = opt('nd', 2); NF = opt('nf', 2 if OWN else 3)
    plan3 = []; fill = []; cq = []
    for bf in range(ND):
        fill += group_dma(c_dma(bf), 'c3'); plan3.append((nxt, bf)); nxt += 1
    gg = G(); gg.role = 'B'
    gg.e(f"""
    v_and_b32 v7, 1, v0
    v_lshlrev_b32 v3, 4, v7
    v_lshlrev_b32 v3, v3, v{DSK}
    v_bfe_u32 v4, v0, 3, 1
    v_cmp_eq_u32 vcc, v4, v{VHF}
    v_cndmask_b32 v3, 0, v3, vcc
    v_bfe_u32 v4, v0, 1, 2
    v_bfe_u32 v6, v0, 4, 1
    v_lshl_add_u32 v4, v6, 2, v4
    """)
    for r in range(8): gg.e(f'v_cmp_eq_u32 vcc, {r}, v4\nv_cndmask_b32 v{DG+r}, 0, v3, vcc')
    for s_ in range(2): gg.e(f'{MF32} {vr(AC2,16)}, {vr(XF+4*s_,4)}, {vr(DG+4*s_,4)}, {"0" if s_ == 0 else vr(AC2,16)}')
    gg.e(f"""
    v_bfe_u32 v5, v0, 1, 1
    v_xor_b32 v4, v6, v{VHF}
    v_lshl_add_u32 v4, v6, 1, v4
    v_lshlrev_b32 v4, 1, v4
    v_xor_b32 v4, v4, v5
    v_bfe_u32 v6, v0, 2, 2
    v_lshl_add_u32 v6, v4, 2, v6
    v_lshlrev_b32 v6, 4, v6
    v_lshl_add_u32 v6, v5, 10, v6
    v_lshl_add_u32 v6, v7, 3, v6
    s_mul_i32 s13, s{sKH}, 2560
    v_add_u32 v{TR}, s13, v6
    v_xor_b32 v{TR+1}, 64, v{TR}
    v_add_u32 v{TR+2}, 0x10000, v{TR}
    v_add_u32 v{TR+3}, 0x10000, v{TR+1}
    v_xor_b32 v{TRO}, 0x200, v{TR}
    v_xor_b32 v{TRO+1}, 0x200, v{TR+1}
    v_xor_b32 v{TRO+2}, 0x200, v{TR+2}
    v_xor_b32 v{TRO+3}, 0x200, v{TR+3}
    v_mov_b32 v{TAG2}, v{TAG}
    s_lshl_b32 s{sT0}, s{sW}, 11
    v_cmp_gt_u32 vcc, 10, v0
    v_cndmask_b32 v3, 0, v0, vcc
    v_lshlrev_b32 v3, 2, v3
    s_add_u32 s13, s{sM0}, 0x18000
    v_add_u32 v5, s13, v1
    v_xor_b32 v6, 0x4000, v5
    v_mul_u32_u24 v7, 20480, v{VHF}
    v_lshl_add_u32 v7, v{VP32}, 2, v7
    s_lshl_b32 s{sT0+1}, s{sRB}, 1
    s_add_u32 s{sT0+1}, s{sT0+1}, s{sKH}
    s_mul_i32 s{sT0+1}, s{sT0+1}, {32*5120}
    s_lshl_b32 s14, s{sN}, 9
    s_add_u32 s{sT0+1}, s{sT0+1}, s14
    s_lshl_b32 s14, s{sWD}, 7
    s_add_u32 s{sT0+1}, s{sT0+1}, s14
    s_add_u32 s{sT0+1}, s{sT0+1}, 2560
    s_mul_i32 s{sHB}, s{sRB}, 163840
    s_add_u32 s{sHB}, s{sHB}, s{sT0}
    s_add_u32 s{sHB}, s{sHB}, {H_OFF:#x}
    """)
    mk_srd(gg, SRD_OUT, 'out', 10485760)
    L1 = [l.strip() for l in gg.lines]
    spread(g, [L1[i:i+6] for i in range(0, len(L1), 6)], fill)
    HO = [30 + u for u in range(10)]
    if CT:
        HO = [0] + [40 + u for u in range(8)] + [18]
        for u in range(1, 10): g.e(f's_lshl_b32 s{HO[u]}, s{30+u}, 7\ns_add_u32 s{HO[u]}, s{HO[u]}, s{sHB}')
    else:
        g.e(f's_add_u32 s14, s{sHB}, 163840\ns_lshl_b32 s30, s{sROT}, 14\ns_add_u32 s30, s30, s{sHB}')
        for u in range(1, 10):
            g.e(f's_add_u32 s{30+u}, s{29+u}, {16384*STEP}\ns_cmp_ge_u32 s{30+u}, s14\ns_cselect_b32 s13, 163840, 0\ns_sub_u32 s{30+u}, s{30+u}, s13')
    g.wait_vm('hs')
    g.e('s_barrier')
    Lf = g.newlabel('Lhflag')
    g.e(f's_cmp_lg_u32 s{sW}, 0\ns_cbranch_scc1 {Lf}\ns_mov_b64 exec, 1')
    g.lines.append(f'    buffer_store_dword v{TAG}, v{ZERO}, {srd(SRD_WS)}, s{sFW} offen sc1')
    g.e('s_mov_b64 exec, -1')
    g.label(Lf)
    AF = [32, 48]
    steps = [(u, kk) for u in range(10) for kk in range(2)]
    def g2_reads(n):
        u, kk = steps[n]; fb = AF[n & 1]; sl = (u + SL0) % 6
        hi = 2*(sl >> 2); o = (sl & 3)*16384 + kk*8192
        return [f'ds_read_b64_tr_b16 {vr(fb+8*k2+4*i+2*uu,2)}, v{(TRO if i else TR)+hi+uu} offset:{o+4096*k2}' for k2 in range(2) for i in range(2) for uu in range(2)]
    def g2_mfma(n):
        u, kk = steps[n]; fb = AF[n & 1]
        order = [(k2, i) for k2 in range(2) for i in range(2)] if n < 19 else [(0, 1), (1, 1), (0, 0), (1, 0)]
        return [f'{MF32} {vr(AC2+16*i,16)}, {vr(fb+8*k2+4*i,4)}, {creg(u,2*kk+k2)}, {"0" if (n == 0 and k2 == 0 and i == 1) else vr(AC2+16*i,16)}' for k2, i in order]
    stamp(g, 6)
    if OWN:
        Lo = g.newlabel('Lown')
        g.e(f's_lshr_b32 s13, s{sWD}, 1\ns_and_b32 s14, s{sRB}, 1\ns_cmp_lg_u32 s13, s14\ns_cbranch_scc1 {Lo}')
        for i8 in range(2):
            g.e(f'ds_write_b128 v{28+i8}, {vr(HP+4*i8,4)} offset:{1024*i8}\nds_write_b128 v{28+i8}, {vr(HP+8+4*i8,4)} offset:{2048+1024*i8}')
        g.label(Lo)
    bufs = [b_ for b_ in range(ND, 3)] + [3, 4]
    bufs = bufs[max(0, len(bufs) - NF):]
    for bf in bufs:
        if nxt < 10:
            emit_items(g, group_dma(c_dma(bf), 'c3' if bf < 3 else f'cc{nxt}'))
            (plan3 if bf < 3 else cq).append((nxt, bf)); nxt += 1
    if OWN:
        assert all(bf != 2 for _, bf in plan3)
        g.e('s_waitcnt lgkmcnt(0)\ns_barrier')
        for r in g2_reads(0) + g2_reads(1): g.e(r)
    g.wait_vm('c3')
    for u, bf in plan3: c_read(u, bf)
    if OWN:
        assert LORD.index(0) < nxt - len(cq) and LORD[5:] == list(range(5, 10))
        g.e(f's_waitcnt lgkmcnt({0 if 0 in [LORD[u] for u, _ in plan3] else 4*len(plan3)})')
        for x in g2_mfma(0) + g2_mfma(1): g.e(x)
    Lh, Lhd = g.newlabel('Lhpoll'), g.newlabel('Lhdone')
    keep = list(g.vm)
    g.e(f's_cmp_lg_u32 s{sW}, 0\ns_cbranch_scc1 {Lhd}\ns_mov_b32 s15, {SPIN_MAX}')
    g.label(Lh)
    g.e(f'buffer_load_dword v4, v3, {srd(SRD_WS)}, s{sFR} offen sc1')
    g.wait_vm0()
    g.e(f'v_cmp_ne_u32 vcc, v4, v{TAG2}\ns_cbranch_vccz {Lhd}')
    g.e(f's_sub_u32 s15, s15, 1\ns_cmp_lg_u32 s15, 0\ns_cbranch_scc1 {Lh}')
    g.label(Lhd)
    g.vm = keep
    g.e('s_waitcnt lgkmcnt(0)')
    for k in range(4): g.e(f'v_add_u32 v{vA+k}, 0x18000, v{vA+k}')
    g.e('s_barrier')
    stamp(g, 7); stamp(g, 2, 'g2')
    def c_read2(u, bf): return [f'ds_read_b128 {creg(LORD[u], ks)}, v{vA + ks} offset:{(bf-3)*32768}' for ks in range(4)]
    def h_dma(u):
        out = [f's_add_u32 m0, s{sT0}, {((u + SL0) % 6)*16384}']
        out += [f'buffer_load_dwordx4 v1, {srd(SRD_WS)}, s{HO[u]} offen offset:{1024*i} sc1 lds' for i in range(2)]
        return [[(x, f'h{u}') for x in out]]
    crest = list(range(nxt, 10))
    NUP = opt('nup', 2) + OWN
    for u in range(OWN, NUP): emit_items(g, h_dma(u))
    freed = []
    if cq:
        g.wait_vm(f'cc{cq[-1][0]}')
        for cu, bf in cq:
            for r in c_read2(cu, bf): g.e(r)
            freed.append(bf)
    def c_items(bf):
        u = crest.pop(0); lst = c_dma(bf)
        its = [[(lst[0], None), (lst[1+i], f'cc{u}')] for i in range(4)]
        its[-1] += [(x, None) for x in lst[5:]]
        return u, its
    BAR = [int(x) for x in OPT.get('bar', '1,2,3,4,5,7,9' if OWN else '0,1,2,3,5,7,9').split(',')]
    hnext = NUP; cpend = []; cfly = []; cready = {}; cdone = {}
    PER = opt('per', 2)
    safe = OWN - 1
    N0 = 2*OWN
    g.wait_vm(f'h{BAR[0]}', 'lgkmcnt(0)'); g.e('s_barrier'); visible = BAR.pop(0)
    stamp(g, 3, 'g2')
    for n in range(N0, len(steps) + 1):
        u = n // 2
        rd = []; extra = []; items = []
        if n > N0: g.e('s_waitcnt lgkmcnt(0)')
        if n < len(steps):
            assert u <= visible
            for bf in freed:
                if crest:
                    cu, its = c_items(bf); cpend += [(cu, it) for it in its]; cfly.append((cu, bf))
            freed = []
            if cfly and cready.get(cfly[0][0], 99) <= n:
                cu, bf = cfly.pop(0)
                g.wait_vm(f'cc{cu}')
                extra += c_read2(cu, bf); freed.append(bf); cdone[cu] = n + 1
            budget = PER
            if hnext < 10 and hnext - 6 <= safe: items += h_dma(hnext); hnext += 1; budget -= 2
            while budget > 0 and cpend:
                cu, it = cpend.pop(0); items.append(it); budget -= 1
                if not cpend or cpend[0][0] != cu: cready[cu] = n + 2
            rd = g2_reads(n) + extra
        m = n - 1
        dobar = n + 1 < len(steps) and (n + 1) // 2 > visible
        if m < N0:
            for r in rd: g.e(r)
            emit_items(g, items)
        else:
            cu_needed = steps[m][0]
            assert cu_needed not in [x for x, _ in cfly] and cu_needed not in crest and cdone.get(cu_needed, 0) <= n, (n, cu_needed)
            RP = opt('rp2', 3)
            for q, x in enumerate(g2_mfma(m)):
                g.e(x)
                for r in (rd[RP*q:RP*q+RP] if q < 3 else rd[RP*q:]): g.e(r)
                if q == 2 and dobar:
                    assert BAR[0] < hnext - (1 if items and str(items[0][0][1]).startswith('h') else 0), (n, BAR, hnext)
                    g.wait_vm(f'h{BAR[0]}'); g.e('s_barrier'); visible = BAR.pop(0)
                    safe = (n - 1) // 2 if (n - 1) % 2 == 1 else (n - 1) // 2 - 1
                    stamp(g, 3 + (n + 1) // 2, 'g2')
                hl = (len(items) + 1) // 2
                if q >= 2: emit_items(g, items[:hl] if q == 2 else items[hl:])
    assert not cfly and not cpend and not crest and hnext == 10
    stamp(g, 8); stamp(g, 13, 'g2')
    osc = ('' if OPT.get('noosc1') else ' sc1') + (' nt' if 'o' in OPT.get('nt', '') else '')
    for q in range(4): g.e(f'ds_write_b128 v5, {vr(AC2+16+4*q,4)} offset:{1024*q}')
    g.e('s_waitcnt lgkmcnt(0)\ns_barrier')
    RA = 128
    for q in range(4): g.e(f'ds_read_b128 {vr(RA+4*q,4)}, v6 offset:{1024*q}')
    for q in range(4):
        g.e(f's_waitcnt lgkmcnt({3-q})')
        for r in range(4):
            g.e(f'v_add_f32 v{RA+4*q+r}, v{RA+4*q+r}, v{AC2+4*q+r}')
            g.e(f'buffer_store_dword v{RA+4*q+r}, v7, {srd(SRD_OUT)}, s{sT0+1} offen{osc}')
            if 4*q+r < 15: g.e(f's_add_u32 s{sT0+1}, s{sT0+1}, {5120 if r < 3 else 5*5120}')
    if DIAG:
        g.wait_vm0(); stamp(g, 9); g.e('s_nop 0' if OPT.get('grp') or OPT.get('clk') else 's_mov_b32 s94, s98'); diag_out(g, 14)
    end_spin(g, TAG2)
    g.e('s_endpgm')

def role_P(g):
    if OPT.get('pm'):
        g.e(f's_sub_u32 s6, s2, 240\ns_lshl_b32 s7, s{sW}, 13\nv_lshl_add_u32 v1, v0, 7, s7\ns_mov_b32 s55, 0x20000\ns_waitcnt lgkmcnt(0)')
        for nm in OPT['pm'].split(','):
            size = 819200 if nm[0] in 'CB' else 2621440
            per = size // 16
            g.e(f's_mul_i32 s8, s6, {per}\ns_add_u32 s52, s{P[nm]}, s8\ns_addc_u32 s53, s{P[nm]+1}, 0\ns_mov_b32 s54, {per}\ns_mov_b32 s9, 0')
            for k in range((per + 65535) // 65536):
                g.e(f'buffer_load_dword v4, v1, s[52:55], s9 offen')
                g.e('s_add_u32 s9, s9, 65536')
        if not OPT.get('pf'):
            g.e('s_waitcnt vmcnt(0)\ns_endpgm')
            return
    g.e(f"""
    s_and_b32 s13, s{sXCD}, 1
    s_lshl_b32 s13, s13, 8
    v_add_u32 v1, s13, v0
    v_mul_u32_u24 v1, 1280, v1
    s_mov_b32 s8, s{sW}
    s_waitcnt lgkmcnt(0)
    s_cmp_eq_u32 s{sIDX}, 30
    s_cselect_b32 s52, s{P['Cre']}, s{P['Cim']}
    s_cselect_b32 s53, s{P['Cre']+1}, s{P['Cim']+1}
    s_mov_b32 s54, 819200
    s_mov_b32 s55, 0x20000
    """)
    if opt('btch', 0):
        g.e(f's_sub_u32 s11, s{sIDX}, 30\ns_lshl_b32 s11, s11, 3\ns_add_u32 s11, s11, s{sW}\ns_add_u32 s11, s11, 160')
        g1_touch(g, 11, 5, 6, 56)
        Lx = g.newlabel('Lpx')
        g.e(f's_add_u32 s11, s11, 16\ns_cmp_ge_u32 s11, 180\ns_cbranch_scc1 {Lx}')
        g1_touch(g, 11, 5, 6, 56)
        g.label(Lx)
    L = g.newlabel('Lpf')
    g.label(L)
    g.e(f"""
    s_mul_i32 s9, s8, 43
    s_lshr_b32 s9, s9, 8
    s_mul_i32 s10, s9, 6
    s_sub_u32 s10, s8, s10
    s_mul_i32 s10, s10, {64*1280}
    s_lshl_b32 s9, s9, 7
    s_add_u32 s10, s10, s9
    buffer_load_dword v4, v1, s[52:55], s10 offen{OPT.get('pfl', '').replace('_', ' ')}
    s_add_u32 s8, s8, 8
    s_cmp_lt_u32 s8, {6*opt('pf', 10)}
    s_cbranch_scc1 {L}
    s_waitcnt vmcnt(0)
    s_endpgm
    """)

def main():
    g = G()
    CODEPF = ''
    xt = sum((((x >> 1) + 2*(x & 1)) % 5) << (4*x) for x in range(8))
    XROT = f's_lshl_b32 s81, s{sXCD}, 2\n    s_lshr_b32 s81, {xt:#x}, s81\n    s_and_b32 s81, s81, 15\n    s_lshl_b32 s81, s81, 8' if opt('xrot', 0) else ''
    if OPT.get('cpf'):
        CODEPF = f"""s_getpc_b64 s[6:7]
    s_and_b32 s6, s6, 0xffffff00
    s_cmp_ge_u32 s{sW}, NCPF
    s_cbranch_scc1 L_nocpf
    s_cmp_lg_u32 s{sIDX}, {opt('cpf', 0)}
    s_cbranch_scc1 L_nocpf
    s_lshl_b32 s8, s{sW}, 13
    v_lshl_add_u32 v2, v0, 7, s8
    v_min_u32 v2, L_exit-{NAME}_kernel, v2
    global_load_dword v255, v2, s[6:7]
L_nocpf:"""
    g.e(f'''
    s_cmp_ge_u32 s2, {NWG}
    s_cbranch_scc1 L_exit
    s_load_dwordx16 s[16:31], s[0:1], 0
    s_load_dwordx16 s[32:47], s[0:1], 64
    s_load_dwordx4 s[48:51], s[0:1], 128
    s_memrealtime s[98:99]
    s_and_b32 s{sXCD}, s2, 7
    s_lshr_b32 s{sIDX}, s2, 3
    v_lshrrev_b32 v1, 6, v0
    v_and_b32 v0, 63, v0
    v_readfirstlane_b32 s{sW}, v1
    {XROT}
    ''')
    if opt('hfront', 0):
        import gen2_a
        g.e(f's_cmp_lt_u32 s{sIDX}, 20\ns_cbranch_scc1 L_roleB')
        if CODEPF: g.e(CODEPF)
        g.e(f's_cmp_ge_u32 s{sIDX}, 30\ns_cbranch_scc1 L_roleP')
        gen2_a.help2(g, sys.modules[__name__])
        g.e('s_branch L_roleA')
        g.label('L_roleB')
        g.vm = []
    else:
        g.e(f'''
    {CODEPF}
    s_cmp_ge_u32 s{sIDX}, 30
    s_cbranch_scc1 L_roleP
    s_cmp_ge_u32 s{sIDX}, 20
    s_cbranch_scc1 L_roleA
    ''')
    g.role = 'B'
    role_B(g)
    g.role = 'A'
    g.label('L_roleA')
    g.vm = []
    if OPT.get('noA'):
        g.e('s_endpgm')
    else:
        import gen2_a
        gen2_a.role_A(g, sys.modules[__name__])
    g.label('L_roleP')
    g.vm = []
    role_P(g)
    g.label('L_exit')
    g.e('s_endpgm')
    body, added = fix_hazards(g.lines)
    body = [l.replace('NCPF', str(opt('ncpf', 3))) for l in body]
    ref = open('cdna_kernels/%s.s.ref' % NAME).read().split('\n')
    head = [l for l in ref if l.startswith(';') and '@launch' not in l]
    out = head + [f'; @launch grid=({NWG},1,1) block=(512,1,1) lds=163840',
        '.amdgcn_target "amdgcn-amd-amdhsa--gfx950"', '.text', f'.globl {NAME}_kernel', '.p2align 8',
        f'.type {NAME}_kernel,@function', f'{NAME}_kernel:'] + body + [
        '.section .rodata,"a"', '.p2align 6', f'.amdhsa_kernel {NAME}_kernel',
        '  .amdhsa_next_free_vgpr 256', '  .amdhsa_next_free_sgpr 102', '  .amdhsa_accum_offset 256',
        '  .amdhsa_group_segment_fixed_size 0', '  .amdhsa_kernarg_size 144', '  .amdhsa_user_sgpr_count 2',
        '  .amdhsa_user_sgpr_kernarg_segment_ptr 1', '  .amdhsa_system_sgpr_workgroup_id_x 1',
        '  .amdhsa_float_denorm_mode_32 3', '.end_amdhsa_kernel', '']
    fn = OPT.get('o', 'cdna_kernels/%s.s' % NAME)
    open(fn, 'w').write('\n'.join(out))
    print('wrote', fn, 'lines', len(out), 'nops added', added)

if __name__ == '__main__':
    main()
```
